```python
import torch

def _softmax(x, axis=-1):
    return torch.softmax(x, dim=axis)
def _gelu(x):
    return torch.nn.functional.gelu(x, approximate="tanh")
def _silu(x):
    return torch.nn.functional.silu(x)
def _sigmoid(x):
    return torch.sigmoid(x)
def _layernorm(x, axis=-1, eps=1e-5):
    m = x.mean(dim=axis, keepdim=True)
    v = x.var(dim=axis, keepdim=True, unbiased=False)
    return (x - m) / torch.sqrt(v + eps)
def _scatter_add(tgt, idx, src, axis=0):
    return tgt.clone().index_add_(axis, idx, src)
def _segment_sum(src, seg, n):
    out = torch.zeros((n,) + src.shape[1:], dtype=src.dtype)
    return out.index_add_(0, seg, src)
def _pad(x, pw):
    flat = tuple(v for pair in reversed(pw) for v in pair)
    return torch.nn.functional.pad(x, flat)

kernel_name = 'standalone__paged_block_table_kv_pagedattention__prompt'

def setup_inputs():

    _w = (lambda a: (lambda t: t.to(torch.bfloat16) if t.is_floating_point() else t)(torch.as_tensor(a)))
    B, Hq, Hkv, Sq, Skv, D = 1, 32, 32, 2048, 2048, 128
    bs = 16
    nbps = max(1, Skv // bs)
    num_phys = B * nbps + 4
    bt = torch.randperm(num_phys)[: B * nbps].reshape(B, nbps).to(torch.int64)
    cl = (nbps * bs - (torch.arange(1, B + 1, dtype=torch.int64) * 2654435761) % max(1, nbps * bs // 2)).to(torch.int64)
    return {
        "q": _w((lambda *s: torch.randn(*s, dtype=torch.bfloat16) * 0.8)(B, Hq, Sq, D)),
        "k_cache": _w((lambda *s: torch.randn(*s, dtype=torch.bfloat16) * 0.8)(num_phys, bs, Hkv, D)),
        "v_cache": _w((lambda *s: torch.randn(*s, dtype=torch.bfloat16) * 0.05)(num_phys, bs, Hkv, D)),
        "block_table": _w(bt),
        "context_lens": _w(cl),
    }

def reference(q, k_cache, v_cache, block_table, context_lens):
    B, Hq, Sq, D = q.shape
    bs = k_cache.shape[1]
    Hkv = k_cache.shape[2]
    nbps = block_table.shape[1]
    Skv = nbps * bs
    bt = block_table.reshape(-1)
    k = (lambda x, *d: x.permute(*d))(k_cache[bt].reshape(B, Skv, Hkv, D), 0, 2, 1, 3)
    v = (lambda x, *d: x.permute(*d))(v_cache[bt].reshape(B, Skv, Hkv, D), 0, 2, 1, 3)
    g = Hq // Hkv
    qg = q.reshape(B, Hkv, g, Sq, D)
    scores = torch.einsum("bhgqd,bhkd->bhgqk", qg, k) * (D ** -0.5)
    pos = torch.arange(Skv)
    msk = pos[None, :] < context_lens[:, None]
    scores = torch.where(msk[:, None, None, None, :], scores, -1e9)
    p = _softmax(scores, axis=-1)
    out = torch.einsum("bhgqk,bhkd->bhgqd", p, v)
    return out.reshape(B, Hq, Sq, D)
```

```python
import re

REG = re.compile(r'^(-|abs\()?([vas])(\d+)\)?$')
RNG = re.compile(r'^([vas])\[(\d+):(\d+)\]$')

def regs_of(op):
    op = op.strip()
    m = REG.match(op)
    if m: return [(m.group(2), int(m.group(3)))]
    m = RNG.match(op)
    if m: return [(m.group(1), i) for i in range(int(m.group(2)), int(m.group(3)) + 1)]
    if op == 'vcc': return [('s', 'vcc')]
    if op == 'm0': return [('s', 'm0')]
    if op == 'exec': return [('s', 'exec')]
    return []

TRANS = ('v_exp_f32', 'v_rcp_f32', 'v_log_f32', 'v_rsq_f32', 'v_sqrt_f32')

class Ins:
    def __init__(self, text):
        self.text = text
        t = text.split(';')[0].strip()
        self.label = t.endswith(':')
        self.directive = t.startswith('.')
        self.rd = []; self.wr = []; self.cls = 'none'; self.op = ''
        self.srcc = []; self.ab = []
        if self.label or self.directive or not t: return
        parts = t.split(None, 1)
        op = self.op = parts[0]
        rest = parts[1] if len(parts) > 1 else ''
        ops = [o.strip() for o in rest.split(',')]
        if ops:
            last = ops[-1].split()
            if last: ops[-1] = last[0]; self.mods = last[1:]
            else: self.mods = []
        R = lambda i: regs_of(ops[i]) if i < len(ops) else []
        allr = lambda a: sum((R(i) for i in range(a, len(ops))), [])
        if op.startswith('v_mfma'):
            self.cls = 'mfma'; self.wr = R(0); self.ab = R(1) + R(2); self.srcc = R(3); self.rd = self.ab + self.srcc
            self.passes = 8 if '32x32' in op else 4
        elif op.startswith('v_smfmac'):
            self.cls = 'mfma'; self.wr = R(0); self.ab = R(1) + R(2) + R(3); self.srcc = R(0); self.rd = self.ab + self.srcc
            self.passes = 8
        elif op.startswith('v_permlane'):
            self.cls = 'valu'; self.wr = R(0) + R(1); self.rd = R(0) + R(1)
        elif op.startswith('v_cmp'):
            self.cls = 'valu'; self.wr = R(0); self.rd = allr(1)
        elif op.startswith('v_'):
            self.cls = 'valu'; self.wr = R(0); self.rd = allr(1)
            if op.startswith('v_fmac') or op.startswith('v_writelane'): self.rd += R(0)
            if op.startswith('v_add_co') or op.startswith('v_addc_co'):
                self.wr += R(1); self.rd = allr(2)
        elif op.startswith('ds_read'):
            self.cls = 'ds'; self.wr = R(0); self.rd = R(1)
        elif op.startswith('ds_write'):
            self.cls = 'ds'; self.rd = allr(0)
        elif op.startswith('buffer_load') or op.startswith('global_load'):
            self.cls = 'vmem'
            if 'lds' in self.mods or 'lds' in op:
                self.rd = allr(0) + [('s', 'm0')]; self.dma = True
            else:
                self.wr = R(0); self.rd = allr(1)
        elif op.startswith('buffer_store') or op.startswith('global_store'):
            self.cls = 'vmem'; self.rd = allr(0); self.store = R(0) if op.startswith('buffer') else R(1)
        elif op.startswith('s_load') or op in ('s_memtime', 's_memrealtime'):
            self.cls = 'smem'; self.wr = R(0); self.rd = allr(1)
        elif op.startswith('s_cmp') or op.startswith('s_cbranch') or op in ('s_branch', 's_barrier', 's_waitcnt', 's_nop', 's_endpgm', 's_setprio', 's_sleep'):
            self.cls = 'salu'; self.rd = allr(0) if op.startswith('s_cmp') else []
            if op.startswith('s_cbranch_vcc'): self.rd = [('s', 'vcc')]
        elif op.startswith('s_'):
            self.cls = 'salu'; self.wr = R(0); self.rd = allr(1)
        else:
            raise ValueError('unknown op ' + op)
    def states(self):
        if self.label or self.directive or self.cls == 'none': return 0
        if self.op == 's_nop': return int(self.text.split()[1]) + 1
        return 1

def need(prev, cur):
    n = 0
    pw = set(prev.wr)
    if prev.cls == 'valu':
        vw = {r for r in pw if r[0] in 'va'}; sw = {r for r in pw if r[0] == 's'}
        if cur.cls == 'mfma' and vw & set(cur.rd): n = max(n, 2)
        if cur.op.startswith('v_permlane') and vw & set(cur.rd): n = max(n, 2)
        if (cur.op.startswith('v_readlane') or cur.op.startswith('v_readfirstlane')) and vw & set(cur.rd): n = max(n, 1)
        if prev.op.split('_e')[0] in TRANS or prev.op in TRANS:
            if cur.cls in ('valu',) and vw & set(cur.rd): n = max(n, 1)
        if sw & set(cur.rd):
            if cur.cls == 'vmem': n = max(n, 5)
            elif cur.op.startswith('v_readlane') or cur.op.startswith('v_writelane'): n = max(n, 4)
            elif cur.cls == 'valu': n = max(n, 2)
            elif cur.cls in ('salu', 'smem'): n = max(n, 1)
        if 'dpp' in cur.text and vw & set(cur.rd): n = max(n, 2)
    if prev.cls == 'salu' and ('s', 'm0') in pw and ('s', 'm0') in cur.rd and cur.cls == 'vmem': n = max(n, 1)
    if prev.cls == 'mfma':
        p = prev.passes
        full = {4: 8, 8: 12}[p]; part = {4: 6, 8: 10}[p]; war = {4: 3, 8: 7}[p]
        if cur.cls == 'mfma':
            if pw & set(cur.ab): n = max(n, full)
            if pw & set(cur.srcc):
                if not (cur.srcc == prev.wr and cur.op == prev.op): n = max(n, part)
            elif pw & set(cur.wr): n = max(n, part)
        elif cur.cls in ('valu', 'ds', 'vmem'):
            if pw & (set(cur.rd) | set(cur.wr)): n = max(n, full)
            if cur.cls == 'valu' and set(prev.srcc) & set(cur.wr): n = max(n, war)
    if prev.cls == 'vmem' and hasattr(prev, 'store') and len(prev.store) >= 3:
        if set(prev.store) & set(cur.wr): n = max(n, 2)
    return n

def check(seq, name='', fix=False):
    errs = []
    lg = []
    vm = []
    for i, cur in enumerate(seq):
        if cur.states() == 0: continue
        dist = 0
        for j in range(i - 1, max(-1, i - 40), -1):
            p = seq[j]
            if p.states() == 0: continue
            n = need(p, cur)
            if n > dist: errs.append((i, n - dist, f'{name}: hazard need {n} have {dist}: [{p.text.strip()}] -> [{cur.text.strip()}]'))
            dist += p.states()
            if dist >= 20: break
        if cur.op == 's_waitcnt':
            m = re.search(r'lgkmcnt\((\d+)\)', cur.text)
            if m:
                k = int(m.group(1))
                if any(x.cls == 'smem' for x in lg) and k > 0: errs.append((i, 0, f'{name}: counted lgkm wait with smem outstanding'))
                lg = lg[len(lg) - k:] if k and len(lg) > k else ([] if k == 0 else lg)
            m = re.search(r'vmcnt\((\d+)\)', cur.text)
            if m:
                k = int(m.group(1))
                vm = vm[len(vm) - k:] if k and len(vm) > k else ([] if k == 0 else vm)
        else:
            touched = set(cur.rd) | set(cur.wr)
            for x in lg + vm:
                if set(x.wr) & touched:
                    errs.append((i, 0, f'{name}: unwaited load [{x.text.strip()}] used by [{cur.text.strip()}]'))
            if cur.cls in ('ds', 'smem'): lg.append(cur)
            if cur.cls == 'vmem': vm.append(cur)
            if len(lg) > 15 and False: errs.append((i, 0, f'{name}: >15 lgkm outstanding'))
    return errs

class Block:
    def __init__(self): self.ins = []
    def __call__(self, text):
        for line in text.strip('\n').split('\n'):
            if line.strip(): self.ins.append(Ins(line))
        return self
    def extend(self, other): self.ins += other.ins; return self
    def autonop(self, ctx=()):
        out = list(ctx); n0 = len(out)
        for cur in self.ins:
            if cur.states():
                dist = 0; add = 0
                for p in reversed(out[-40:]):
                    if p.states() == 0: continue
                    add = max(add, need(p, cur) - dist)
                    dist += p.states()
                    if dist >= 20: break
                if add > 0: out.append(Ins(f'  s_nop {add - 1}'))
            out.append(cur)
        self.ins = out[n0:]
        return self
    def text(self):
        return '\n'.join((i.text.strip() if i.label or i.directive else '  ' + i.text.strip()) for i in self.ins) + '\n'
```

```python
import sys, struct
from asmlib import *

NAME = 'standalone__paged_block_table_kv_pagedattention__prompt'
opt = dict(ts=0, force_slow=0)
for a in sys.argv[2:]:
    k, v = a.split('='); opt[k] = int(v)

PS = 1056
US = 8 * PS
PR = 2 * US
KB = 0; VB = 3 * PR; QB = VB + 2 * PR
LDS = 163840
f2u = lambda x: struct.unpack('<I', struct.pack('<f', x))[0]
CSCALE = f2u(1.4426950408889634 / 128 ** 0.5)
LMAX = f2u(2.0 ** 40)

vO = lambda qb, db: 128 + qb * 32 + db * 4
vS = lambda e: 96 + e
vP = lambda buf, j: 64 + buf * 16 + j
vC = lambda qb: 48 + qb * 4
vL = lambda pr: 40 + pr * 4
vA = 36; vIdx = 35; vK = 34; vV = 33; vTab = 32; vOff = 28
vK0 = 27; vV0 = 26; vLane = 25; vQoff = 24; vOo = 23; vKey = 22
vM = 8
aQ = lambda qb, ks: qb * 16 + ks * 4
aK = lambda kb, ks: 64 + (kb * 4 + ks) * 4
aV = lambda db: 96 + db * 4
R = lambda k, b, n=4: f'{k}[{b}:{b + n - 1}]'
sQ = 20; sKV = 24; sO = 28; sBT = 32; sKs = 36; sVs = 40
sW = 44; sHead = 45; sQoff = 46; sCl = 47; sF = 48; sIt = 49; sRd = 50; sWb = 51; sU = 52; sPg = 53; sNrec = 54
sScale = 56
sT = 58; sT2 = 59; sQoff2 = 55
sTS = 64

tsn = [0]
def TS(b):
    if opt['ts']:
        b(f's_memrealtime s[{sTS + 2 * tsn[0]}:{sTS + 2 * tsn[0] + 1}]'); tsn[0] += 1

def mf(d, a, bb, c): return f'v_mfma_f32_16x16x32_bf16 {d}, {a}, {bb}, {c}'
def qk(qb, kb, ks, c0):
    d = R('v', vS(qb * 8 + kb * 4))
    return mf(d, R('a', aK(kb, ks)), R('a', aQ(qb, ks)), d if ks else c0)
def pv(qb, db, buf):
    d = R('v', vO(qb, db))
    return mf(d, R('a', aV(db)), R('v', vP(buf, qb * 4)), d)
def smf(pr, buf): return f'v_smfmac_f32_16x16x64_bf16 {R("v", vL(pr))}, {R("v", vA)}, {R("v", vP(buf, pr * 8), 8)}, v{vIdx}'
def ex(e): return f'v_exp_f32 v{vS(e)}, v{vS(e)}'
def cv(j, buf): return f'v_cvt_pk_bf16_f32 v{vP(buf, j)}, v{vS(2 * j)}, v{vS(2 * j + 1)}'
def rdK(i, off, va=vK): return f'ds_read_b128 {R("a", aK(i // 4, i % 4))}, v{va} offset:{off + (i // 4) * 512 + (i % 4) * 64}'
def rdV(i, off, va=vV): return f'ds_read_b64_tr_b16 {R("a", aV(i // 2) + (i % 2) * 2, 2)}, v{va} offset:{off + (i % 2) * 512 + (i // 2) * 32}'
def dma(i, srd=sKV, so=sPg): return f'buffer_load_dwordx4 v{vOff + i}, {R("s", srd)}, s{so} offen offset:{i * PS} lds'

pro = Block()
b = pro
b(f'''
s_cmp_ge_u32 s2, 256
s_cbranch_scc1 L_end
s_load_dwordx16 s[4:19], s[0:1], 0
''')
TS(b)
b(f'''
v_lshrrev_b32 v1, 6, v0
v_and_b32 v{vLane}, 63, v0
v_readfirstlane_b32 s{sW}, v1
s_and_b32 s{sHead}, s2, 7
s_lshl_b32 s{sHead}, s{sHead}, 2
s_bfe_u32 s{sT}, s2, 0x20003
s_add_u32 s{sHead}, s{sHead}, s{sT}
s_lshr_b32 s{sT}, s2, 5
s_lshl_b32 s{sQoff}, s{sHead}, 19
s_lshl_b32 s{sT}, s{sT}, 16
s_add_u32 s{sQoff}, s{sQoff}, s{sT}
s_lshl_b32 s{sT}, s{sW}, 14
s_add_u32 s{sQoff}, s{sQoff}, s{sT}
s_add_u32 s{sQoff2}, s{sQoff}, 8192
v_lshlrev_b32 v{vQoff}, 4, v{vLane}
s_and_b32 s{sT}, s{sW}, 1
s_lshl_b32 s{sT2}, s{sT}, 2
v_lshl_add_u32 v1, v{vLane}, 3, s{sT2}
s_mul_i32 s{sWb}, s{sT}, {4 * PS}
s_mul_i32 s{sT}, s{sW}, {PR}
s_add_u32 s{sT}, s{sT}, {QB}
s_mov_b32 m0, s{sT}
s_mov_b32 s{sQ + 2}, 16777216
s_mov_b32 s{sQ + 3}, 0x20000
s_mov_b32 s{sO + 2}, 16777216
s_mov_b32 s{sO + 3}, 0x20000
s_mov_b32 s{sBT + 2}, 512
s_mov_b32 s{sBT + 3}, 0x20000
s_lshl_b32 s{sT}, s{sHead}, 8
s_sub_u32 s{sNrec}, 17301504, s{sT}
s_mov_b32 s{sKV + 2}, s{sNrec}
s_mov_b32 s{sKV + 3}, 0x20000
s_mov_b32 s{sKs + 2}, s{sNrec}
s_mov_b32 s{sKs + 3}, 0x20000
s_mov_b32 s{sVs + 2}, s{sNrec}
s_mov_b32 s{sVs + 3}, 0x20000
s_waitcnt lgkmcnt(0)
s_load_dword s{sCl}, s[12:13], 0
s_mov_b32 s{sBT}, s10
s_mov_b32 s{sBT + 1}, s11
buffer_load_dword v{vTab}, v1, {R("s", sBT)}, 0 offen
s_mov_b32 s{sQ}, s4
s_mov_b32 s{sQ + 1}, s5
s_mov_b32 s{sPg}, s{sQoff}
''')
def qdma(b, half):
    for p in range(8):
        b(f'buffer_load_dwordx4 v{vQoff}, {R("s", sQ)}, s{sPg} offen offset:{(p % 4) * 1024} lds')
        if p % 4 == 3:
            b(f's_add_u32 m0, m0, {4096 + 32}\ns_add_u32 s{sPg}, s{sPg}, 4096')
        else:
            b('s_add_u32 m0, m0, 32')
qdma(b, 0)
TS(b)
b(f'''
s_add_u32 s{sKs}, s6, s{sT}
s_addc_u32 s{sKs + 1}, s7, 0
s_add_u32 s{sVs}, s8, s{sT}
s_addc_u32 s{sVs + 1}, s9, 0
s_mov_b32 s{sO}, s14
s_mov_b32 s{sO + 1}, s15
s_cmp_lt_u32 s{sW}, 2
s_cselect_b32 s{sKV}, s{sKs}, s{sVs}
s_cselect_b32 s{sKV + 1}, s{sKs + 1}, s{sVs + 1}
s_cselect_b32 s{sT}, {KB}, {VB}
s_add_u32 s{sWb}, s{sWb}, s{sT}
v_lshrrev_b32 v2, 4, v{vLane}
v_and_b32 v3, 15, v{vLane}
v_lshlrev_b32 v4, 13, v2
v_lshl_add_u32 v{vOff}, v3, 4, v4
v_add_u32 v{vOff + 1}, {32768 - PS}, v{vOff}
v_add_u32 v{vOff + 2}, {2 * (32768 - PS)}, v{vOff}
v_add_u32 v{vOff + 3}, {3 * (32768 - PS)}, v{vOff}
v_and_b32 v4, 7, v3
v_lshrrev_b32 v5, 3, v3
v_mul_u32_u24 v6, {PS}, v4
v_lshl_add_u32 v6, v5, 8, v6
v_lshl_add_u32 v{vK0}, v2, 4, v6
v_lshl_add_u32 v6, v4, 2, v5
v_lshlrev_b32 v6, 8, v6
v_and_b32 v7, 1, v2
v_lshl_add_u32 v6, v7, 5, v6
v_lshrrev_b32 v16, 1, v2
v_lshl_add_u32 v{vOo}, v16, 4, v6
v_lshl_add_u32 v{vKey}, v7, 4, v16
v_bfe_u32 v4, v{vLane}, 2, 3
v_mul_u32_u24 v6, {PS}, v4
v_lshl_add_u32 v6, v16, 8, v6
v_and_b32 v4, 3, v{vLane}
v_lshl_add_u32 v6, v4, 3, v6
v_add_u32 v{vV0}, {VB}, v6
v_bfe_u32 v4, v{vLane}, 1, 1
v_cmp_eq_u32 vcc, v4, v16
v_mov_b32 v5, 0x3f803f80
v_and_b32 v4, 1, v{vLane}
v_cndmask_b32 v{vA}, 0, v5, vcc
v_cndmask_b32 v{vA + 1}, 0, v5, vcc
v_cndmask_b32 v{vA + 2}, 0, v5, vcc
v_cndmask_b32 v{vA + 3}, 0, v5, vcc
v_mul_u32_u24 v4, 0xaaaa, v4
v_add_u32 v{vIdx}, 0x4444, v4
s_mov_b32 s{sScale}, {CSCALE:#x}
s_waitcnt lgkmcnt(0)
s_cmp_lt_i32 s{sCl}, 1
s_cselect_b32 s{sScale}, 0, s{sScale}
s_cselect_b32 s{sCl}, 2048, s{sCl}
s_min_u32 s{sCl}, s{sCl}, 2048
s_mov_b32 s{sScale + 1}, s{sScale}
s_sub_u32 s{sF}, s{sCl}, 1
s_lshr_b32 s{sF}, s{sF}, 5
s_mov_b32 s{sT2}, m0
s_waitcnt vmcnt(8)
v_lshlrev_b32 v{vTab}, 17, v{vTab}
''')
TS(b)
b(f'''
s_and_b32 s{sT}, s{sF}, 1
s_cmp_lg_u32 s{sT}, 0
s_cbranch_scc1 L_slow0
s_cmp_lt_u32 s{sF}, 2
s_cbranch_scc1 L_slow0
''')
if opt['force_slow'] == 1: b('s_branch L_slow0')
def unit_dma(b, lane, m0off):
    b(f'v_readlane_b32 s{sPg}, v{vTab}, {lane}\ns_add_u32 m0, s{sWb}, {m0off}')
    for i in range(4): b(dma(i))
b(f's_cmp_ge_u32 s{sW}, 2\ns_cbranch_scc1 L_nok0')
kblk = Block()
unit_dma(kblk, f's{sF}', 2 * PR)
unit_dma(kblk, 0, 2 * PR + US)
kblk.autonop(pro.ins)
pro2 = Block(); b = pro2
b('L_nok0:')
b(f's_mov_b32 m0, s{sT2}\ns_mov_b32 s{sPg}, s{sQoff2}')
qdma(b, 1)
b(f'''
s_cmp_lt_u32 s{sW}, 2
s_cselect_b32 s{sU}, 1, s{sF}
''')
unit_dma(b, f's{sU}', 0)
b(f'''
s_cmp_lt_u32 s{sW}, 2
s_cselect_b32 s{sU}, 2, 0
''')
for n in range(1, 4):
    b(f's_cmp_lt_u32 s{sU}, s{sF}\ns_cselect_b32 s{sKV + 2}, s{sNrec}, 0')
    unit_dma(b, f's{sU}', n * US)
    b(f's_add_u32 s{sU}, s{sU}, 1')
TS(b)
def zero_acc(b):
    for r in range(128, 256, 2): b(f'v_mov_b64 v[{r}:{r + 1}], 0')
    for r in range(40, 48, 2): b(f'v_mov_b64 v[{r}:{r + 1}], 0')
zero_acc(b)
b(f's_lshl_b32 s{sT}, s{sF}, 5\ns_sub_u32 s{sT}, s{sCl}, s{sT}\nv_mov_b32 v5, 0xff800000')
for kb in range(2):
    for r in range(4):
        b(f'v_add_u32 v4, {4 * r + 2 * kb}, v{vKey}\nv_cmp_le_u32 vcc, s{sT}, v4\nv_cndmask_b32 v{vM + kb * 4 + r}, 0, v5, vcc')
b(f's_mul_i32 s{sT}, s{sW}, {PR}\ns_add_u32 s{sT}, s{sT}, {QB}\nv_add_u32 v{vK}, s{sT}, v{vK0}')
def qload(b, half):
    for q2 in range(2):
        for ks in range(4):
            b(f'ds_read_b128 {R("v", 64 + q2 * 16 + ks * 4)}, v{vK} offset:{half * US + q2 * 512 + ks * 64}')
def qscale(b, half):
    for i in range(0, 32, 2):
        t = 16 + (i % 4) * 0
        b(f'''
v_lshlrev_b32 v16, 16, v{64 + i}
v_and_b32 v17, 0xffff0000, v{64 + i}
v_lshlrev_b32 v18, 16, v{65 + i}
v_and_b32 v19, 0xffff0000, v{65 + i}
v_pk_mul_f32 v[16:17], v[16:17], s[{sScale}:{sScale + 1}]
v_pk_mul_f32 v[18:19], v[18:19], s[{sScale}:{sScale + 1}]
v_cvt_pk_bf16_f32 v1, v16, v17
v_cvt_pk_bf16_f32 v2, v18, v19
v_accvgpr_write_b32 a{half * 32 + i}, v1
v_accvgpr_write_b32 a{half * 32 + i + 1}, v2
''')
b('s_waitcnt vmcnt(24)')
TS(b)
qload(b, 0)
b('s_barrier')
for i in range(8): b(rdK(i, 2 * PR, vK0))
b('s_waitcnt lgkmcnt(0)' if opt['ts'] else 's_waitcnt lgkmcnt(8)')
qscale(b, 0)
b('s_waitcnt vmcnt(16) lgkmcnt(0)')
TS(b)
qload(b, 1)
for qb in range(2):
    for kb in range(2):
        for ks in range(4): b(qk(qb, kb, ks, R('v', vM + kb * 4)))
b('s_waitcnt lgkmcnt(0)')
qscale(b, 1)
for qb in range(2, 4):
    for kb in range(2):
        for ks in range(4): b(qk(qb, kb, ks, R('v', vM + kb * 4)))
for i in range(8): b(rdK(i, 2 * PR + US, vK0))
def rowmax(b, qb, dst, t):
    s = vS(qb * 8)
    b(f'''
v_max3_f32 v{dst}, v{s}, v{s + 1}, v{s + 2}
v_max3_f32 v{t}, v{s + 3}, v{s + 4}, v{s + 5}
v_max3_f32 v{dst}, v{dst}, v{s + 6}, v{s + 7}
v_max_f32 v{dst}, v{dst}, v{t}
v_mov_b32 v{t}, v{dst}
v_permlane32_swap_b32 v{dst}, v{t}
v_max_f32 v{dst}, v{dst}, v{t}
v_mov_b32 v{t}, v{dst}
v_permlane16_swap_b32 v{dst}, v{t}
v_max_f32 v{dst}, v{dst}, v{t}
''')
for qb in range(4):
    rowmax(b, qb, 1, 2)
    for r in range(4): b(f'v_sub_f32 v{vC(qb) + r}, 0, v1')
    for e in range(8): b(f'v_sub_f32 v{vS(qb * 8 + e)}, v{vS(qb * 8 + e)}, v1')
    for e in range(qb * 8, min(qb * 8 + 8, 27)):
        b(ex(e))
    for j in range(qb * 4, min(qb * 4 + 4, 13)): b(cv(j, 0))
b(f'''
v_mov_b32 v{vK}, v{vK0}
v_mov_b32 v{vV}, v{vV0}
s_mov_b32 s{sRd}, 0
s_add_u32 m0, s{sWb}, {2 * PR}
s_lshr_b32 s{sIt}, s{sF}, 1
s_waitcnt vmcnt(8) lgkmcnt(0)
s_barrier
''')
TS(b)
pro.autonop(); pro2.autonop(kblk.ins)

def period(u):
    m = [qk(qb, kb, ks, R('v', vC(qb))) for qb in range(4) for kb in range(2) for ks in range(4)]
    m += [pv(qb, db, u) for qb in range(4) for db in range(8)]
    m += [smf(0, u), smf(1, u)]
    sal = [[] for _ in m]; mem = [[] for _ in m]; val = [[] for _ in m]
    for k, e in enumerate(range(27, 32)): val[2 * k].append(ex(e))
    for e in range(27): val[10 + 2 * e].append(ex(e))
    for k, j in enumerate((13, 14, 15)): val[1 + 4 * k].append(cv(j, u))
    for j in range(13): val[13 + 4 * j].append(cv(j, 1 - u))
    i = 0
    for g in range(1, 22, 2):
        for _ in range(1 if g % 4 == 1 else 2):
            mem[g].append(rdV(i, u * US)); i += 1
    assert i == 16
    for i, g in enumerate((33, 35, 37, 41, 45, 49, 53, 57)): mem[g].append(rdK(i, u * US))
    sal[30].append('s_waitcnt lgkmcnt(0)')
    val[23].append(f'v_readlane_b32 s{sPg}, v{vTab}, s{sU}')
    sal[24].append(f's_cmp_lt_u32 s{sU}, s{sF}')
    sal[26].append(f's_cselect_b32 s{sKV + 2}, s{sNrec}, 0')
    sal[28].append(f's_add_u32 s{sU}, s{sU}, 1')
    for i, g in enumerate((39, 43, 47, 51)): mem[g].append(dma(i))
    if u == 0:
        sal[52].append(f's_add_u32 m0, m0, {US}')
        sal[64].append('s_waitcnt lgkmcnt(0)')
    else:
        sal[52].append(f's_add_u32 m0, s{sWb}, s{sRd}')
        sal[10].append(f's_add_u32 s{sT}, s{sRd}, {PR}')
        sal[12].append(f's_cmp_eq_u32 s{sT}, {3 * PR}')
        sal[14].append(f's_cselect_b32 s{sT}, 0, s{sT}')
        val[27].append(f'v_add_u32 v{vV}, s{sT}, v{vV0}')
        val[59].append(f'v_add_u32 v{vK}, s{sT}, v{vK0}')
        sal[54].append(f's_mov_b32 s{sRd}, s{sT}')
        sal[56].append(f's_sub_u32 s{sIt}, s{sIt}, 1')
        sal[58].append(f's_cmp_lg_u32 s{sIt}, 0')
        sal[63].append('s_waitcnt vmcnt(8) lgkmcnt(0)')
        sal[64].append('s_barrier')
        sal[65].append('s_cbranch_scc1 L_loop')
    blk = Block()
    for g in range(len(m)):
        blk(m[g])
        for x in sal[g] + mem[g] + val[g]: blk(x)
    return blk
loop = Block()('.p2align 6')('L_loop:').extend(period(0)).extend(period(1))

epi = Block(); b = epi
TS(b)
for i in range(16): b(rdV(i, 0))
for e in range(27, 32): b(ex(e))
for j in range(13, 16): b(cv(j, 0))
b('s_waitcnt lgkmcnt(0)')
b(smf(0, 0)); b(smf(1, 0))
for qb in range(4):
    for db in range(8): b(pv(qb, db, 0))
for qb in range(4): b(f'v_add_f32 v{1 + qb}, v{vL(0) + 2 * qb}, v{vL(0) + 2 * qb + 1}')
b(f'''
v_max3_f32 v5, v1, v2, v3
v_add_f32 v6, v1, v2
v_add_f32 v7, v3, v4
v_add_f32 v5, v6, v7
v_cmp_nge_f32 vcc, {LMAX:#x}, v5
s_cbranch_vccnz L_slow
''')
if opt['force_slow'] == 2: b('s_branch L_slow')
fin = Block(); b = fin
b('L_fin:')
TS(b)
for qb in range(4): b(f'v_rcp_f32 v{8 + 2 * qb}, v{1 + qb}')
for qb in range(4):
    for m in range(4):
        o = vO(qb, 2 * m); t = 64 + ((qb * 4 + m) % 4) * 4
        for i in range(0, 8, 2): b(f'v_pk_mul_f32 v[{o + i}:{o + i + 1}], v[{o + i}:{o + i + 1}], v[{8 + 2 * qb}:{9 + 2 * qb}] op_sel_hi:[1,0]')
        for i in range(4): b(f'v_cvt_pk_bf16_f32 v{t + i}, v{o + 2 * i}, v{o + 2 * i + 1}')
        b(f'v_permlane16_swap_b32 v{t}, v{t + 2}\nv_permlane16_swap_b32 v{t + 1}, v{t + 3}')
        b(f'buffer_store_dwordx4 {R("v", t)}, v{vOo}, {R("s", sO)}, s{sQoff2 if qb >= 2 else sQoff} offen offset:{(qb & 1) * 512 + m * 64}')
if opt['ts']:
    TS(b)
    b('s_waitcnt vmcnt(0)')
    TS(b)
    n = tsn[0]
    b(f's_waitcnt lgkmcnt(0)\ns_mov_b32 s{sQ}, s18\ns_mov_b32 s{sQ + 1}, s19\ns_lshl_b32 s{sT}, s2, 2\ns_add_u32 s{sT}, s{sT}, s{sW}\ns_lshl_b32 s{sT}, s{sT}, 6\nv_mov_b32 v2, 0')
    for i in range(n):
        b(f'v_mov_b32 v1, s{sTS + 2 * i}\nbuffer_store_dword v1, v2, {R("s", sQ)}, s{sT} offen offset:{4 * i}')
b('L_end:\ns_endpgm')
epi.autonop(loop.ins); fin.autonop(epi.ins)

slow0 = Block(); b = slow0
b('L_slow0:')
b(f's_mov_b32 m0, s{sT2}\ns_mov_b32 s{sPg}, s{sQoff2}')
qdma(b, 1)
b(f's_mul_i32 s{sT}, s{sW}, {PR}\ns_add_u32 s{sT}, s{sT}, {QB}\nv_add_u32 v{vK}, s{sT}, v{vK0}\ns_waitcnt vmcnt(0)')
for h in range(2):
    qload(b, h); b('s_waitcnt lgkmcnt(0)'); qscale(b, h)
slow = Block(); b = slow
b('L_slow:')
vMx = 8; vLs = 12
b(f'''
s_waitcnt vmcnt(0)
s_sub_u32 s{sT}, s{sW}, 1
s_and_b32 s{sT}, s{sT}, 3
s_add_u32 s{sT}, s{sT}, 1
s_mul_i32 s{sT}, s{sT}, {PR}
s_add_u32 s{sWb}, s{sT}, {QB}
v_add_u32 v{vK}, s{sWb}, v{vK0}
s_sub_u32 s{sT}, s{sWb}, {VB}
v_add_u32 v{vV}, s{sT}, v{vV0}
s_mov_b32 s{sU}, 0
''')
zero_acc(b)
for qb in range(4): b(f'v_mov_b32 v{vMx + qb}, 0xff800000\nv_mov_b32 v{vLs + qb}, 0')
sl = Block(); b = sl
b('L_sloop:')
b(f'''
s_lshl_b32 s{sT}, s{sU}, 3
s_load_dwordx2 s[60:61], s[10:11], s{sT}
s_waitcnt lgkmcnt(0)
s_lshl_b32 s60, s60, 17
s_lshl_b32 s61, s61, 17
''')
def sdma(b, srd):
    b(f's_mov_b32 m0, s{sWb}')
    for i in range(4): b(dma(i, srd, 60))
    b(f's_add_u32 m0, s{sWb}, {4 * PS}')
    for i in range(4): b(dma(i, srd, 61))
sdma(b, sKs)
b('s_waitcnt vmcnt(0)')
for i in range(8): b(rdK(i, 0))
b('s_waitcnt lgkmcnt(0)')
sdma(b, sVs)
for qb in range(4):
    for kb in range(2):
        for ks in range(4): b(qk(qb, kb, ks, '0'))
b(f's_lshl_b32 s{sT}, s{sU}, 5\ns_sub_u32 s{sT}, s{sCl}, s{sT}\nv_mov_b32 v5, 0xff800000')
for kb in range(2):
    for r in range(4):
        b(f'v_add_u32 v4, {4 * r + 2 * kb}, v{vKey}\nv_cmp_le_u32 vcc, s{sT}, v4')
        for qb in range(4):
            s = vS(qb * 8 + kb * 4 + r)
            b(f'v_cndmask_b32 v{s}, v{s}, v5, vcc')
for qb in range(4):
    rowmax(b, qb, 1, 2)
    b(f'''
v_max_f32 v1, v1, v{vMx + qb}
v_sub_f32 v2, v{vMx + qb}, v1
v_exp_f32 v2, v2
v_mov_b32 v{vMx + qb}, v1
''')
    for e in range(8): b(f'v_sub_f32 v{vS(qb * 8 + e)}, v{vS(qb * 8 + e)}, v1')
    for e in range(8): b(ex(qb * 8 + e))
    b(f'v_mul_f32 v{vLs + qb}, v{vLs + qb}, v2')
    for i in range(32): b(f'v_mul_f32 v{vO(qb, 0) + i}, v{vO(qb, 0) + i}, v2')
    for j in range(4): b(cv(qb * 4 + j, 0))
    for j in range(4):
        b(f'''
v_lshlrev_b32 v3, 16, v{vP(0, qb * 4 + j)}
v_and_b32 v4, 0xffff0000, v{vP(0, qb * 4 + j)}
v_add_f32 v{vLs + qb}, v{vLs + qb}, v3
v_add_f32 v{vLs + qb}, v{vLs + qb}, v4
''')
b('s_waitcnt vmcnt(0)')
for i in range(8): b(rdV(i, 0))
b('s_waitcnt lgkmcnt(0)')
for i in range(8, 16): b(rdV(i, 0))
b('s_waitcnt lgkmcnt(0)')
for qb in range(4):
    for db in range(8): b(pv(qb, db, 0))
b(f'''
s_nop 7
s_add_u32 s{sU}, s{sU}, 1
s_cmp_le_u32 s{sU}, s{sF}
s_cbranch_scc1 L_sloop
''')
se = Block(); b = se
for qb in range(4):
    b(f'''
v_mov_b32 v5, v{vLs + qb}
v_permlane32_swap_b32 v5, v{vLs + qb}
v_add_f32 v{vLs + qb}, v{vLs + qb}, v5
v_mov_b32 v5, v{vLs + qb}
v_permlane16_swap_b32 v5, v{vLs + qb}
v_add_f32 v{1 + qb}, v{vLs + qb}, v5
''')
b('s_branch L_fin')
slow0.autonop(pro.ins); slow.autonop(epi.ins); sl.autonop(slow.ins); se.autonop(sl.ins)

errs = []
errs += check(pro.ins + kblk.ins + pro2.ins + loop.ins + loop.ins + epi.ins + fin.ins, 'fastK')
errs += check(pro.ins + pro2.ins + loop.ins + loop.ins + epi.ins + slow.ins + sl.ins + sl.ins + se.ins + fin.ins, 'fastV+slow')
errs += check(pro.ins + slow0.ins + slow.ins + sl.ins + sl.ins + se.ins + fin.ins, 'slow0')
for e in errs: print(e[2], file=sys.stderr)
assert not errs

hdr = open('cdna_kernels/' + NAME + '.s.ref').read().split('; Override launch')[0]
out = hdr + f'''; @launch grid=(256,1,1) block=(256,1,1) lds={LDS}
; Generated by gen/gen1.py (hand-scheduled instruction streams).
; One workgroup = one head x 256 query rows; each wave owns 64 rows. K/V pages are gathered through
; the block table by LDS-DMA. Softmax shift = row max of the first processed key chunk; the final row sums
; are range-checked and the wave recomputes with the exact running max (L_slow) if the shift was unsafe.
.amdgcn_target "amdgcn-amd-amdhsa--gfx950"
.text
.globl {NAME}_kernel
.p2align 8
.type {NAME}_kernel,@function
{NAME}_kernel:
'''
for blk in (pro, kblk, pro2, loop, epi, fin, slow0, slow, sl, se): out += blk.text()
out += f'''.section .rodata,"a"
.p2align 6
.amdhsa_kernel {NAME}_kernel
  .amdhsa_next_free_vgpr 384
  .amdhsa_next_free_sgpr 102
  .amdhsa_accum_offset 256
  .amdhsa_group_segment_fixed_size 0
  .amdhsa_kernarg_size 64
  .amdhsa_user_sgpr_count 2
  .amdhsa_user_sgpr_kernarg_segment_ptr 1
  .amdhsa_system_sgpr_workgroup_id_x 1
.end_amdhsa_kernel
'''
open(sys.argv[1], 'w').write(out)
```

```python
import re

REG = re.compile(r'^(-|abs\()?([vas])(\d+)\)?$')
RNG = re.compile(r'^([vas])\[(\d+):(\d+)\]$')

def regs_of(op):
    op = op.strip()
    m = REG.match(op)
    if m: return [(m.group(2), int(m.group(3)))]
    m = RNG.match(op)
    if m: return [(m.group(1), i) for i in range(int(m.group(2)), int(m.group(3)) + 1)]
    if op == 'vcc': return [('s', 'vcc')]
    if op == 'm0': return [('s', 'm0')]
    if op == 'exec': return [('s', 'exec')]
    return []

TRANS = ('v_exp_f32', 'v_rcp_f32', 'v_log_f32', 'v_rsq_f32', 'v_sqrt_f32')

class Ins:
    def __init__(self, text):
        self.text = text
        t = text.split(';')[0].strip()
        self.label = t.endswith(':')
        self.directive = t.startswith('.')
        self.rd = []; self.wr = []; self.cls = 'none'; self.op = ''
        self.srcc = []; self.ab = []
        if self.label or self.directive or not t: return
        parts = t.split(None, 1)
        op = self.op = parts[0]
        rest = parts[1] if len(parts) > 1 else ''
        rest = re.sub(r'\s+(op_sel|op_sel_hi|neg_lo|neg_hi|quad_perm):\[[^\]]*\]', '', rest)
        ops = [o.strip() for o in rest.split(',')]
        if ops:
            last = ops[-1].split()
            if last: ops[-1] = last[0]; self.mods = last[1:]
            else: self.mods = []
        R = lambda i: regs_of(ops[i]) if i < len(ops) else []
        allr = lambda a: sum((R(i) for i in range(a, len(ops))), [])
        if op.startswith('v_mfma'):
            self.cls = 'mfma'; self.wr = R(0); self.ab = R(1) + R(2); self.srcc = R(3); self.rd = self.ab + self.srcc
            self.passes = 8 if '32x32' in op else 4
        elif op.startswith('v_smfmac'):
            self.cls = 'mfma'; self.wr = R(0); self.ab = R(1) + R(2) + R(3); self.srcc = R(0); self.rd = self.ab + self.srcc
            self.passes = 8 if '32x32' in op else 4
        elif op.startswith('v_permlane'):
            self.cls = 'valu'; self.wr = R(0) + R(1); self.rd = R(0) + R(1)
        elif op.startswith('v_cmp'):
            self.cls = 'valu'; self.wr = R(0); self.rd = allr(1)
        elif op.startswith('v_'):
            self.cls = 'valu'; self.wr = R(0); self.rd = allr(1)
            if op.startswith('v_fmac') or op.startswith('v_writelane'): self.rd += R(0)
            if op.startswith('v_add_co') or op.startswith('v_addc_co'):
                self.wr += R(1); self.rd = allr(2)
        elif op.startswith('ds_read'):
            self.cls = 'ds'; self.wr = R(0); self.rd = R(1)
        elif op.startswith('ds_write'):
            self.cls = 'ds'; self.rd = allr(0)
        elif op.startswith('buffer_load') or op.startswith('global_load'):
            self.cls = 'vmem'
            if 'lds' in self.mods or 'lds' in op:
                self.rd = allr(0) + [('s', 'm0')]; self.dma = True
            else:
                self.wr = R(0); self.rd = allr(1)
        elif op.startswith('buffer_store') or op.startswith('global_store'):
            self.cls = 'vmem'; self.rd = allr(0); self.store = R(0) if op.startswith('buffer') else R(1)
        elif op.startswith('s_load') or op in ('s_memtime', 's_memrealtime'):
            self.cls = 'smem'; self.wr = R(0); self.rd = allr(1)
        elif op.startswith('s_cmp') or op.startswith('s_cbranch') or op in ('s_branch', 's_barrier', 's_waitcnt', 's_nop', 's_endpgm', 's_setprio', 's_sleep'):
            self.cls = 'salu'; self.rd = allr(0) if op.startswith('s_cmp') else []
            if op.startswith('s_cbranch_vcc'): self.rd = [('s', 'vcc')]
        elif op.startswith('s_'):
            self.cls = 'salu'; self.wr = R(0); self.rd = allr(1)
        else:
            raise ValueError('unknown op ' + op)
    def states(self):
        if self.label or self.directive or self.cls == 'none': return 0
        if self.op == 's_nop': return int(self.text.split()[1]) + 1
        return 1

def need(prev, cur):
    n = 0
    pw = set(prev.wr)
    if prev.cls == 'valu':
        vw = {r for r in pw if r[0] in 'va'}; sw = {r for r in pw if r[0] == 's'}
        if cur.cls == 'mfma' and vw & set(cur.rd): n = max(n, 2)
        if cur.op.startswith('v_permlane') and vw & set(cur.rd): n = max(n, 2)
        if (cur.op.startswith('v_readlane') or cur.op.startswith('v_readfirstlane')) and vw & set(cur.rd): n = max(n, 1)
        if prev.op.split('_e')[0] in TRANS or prev.op in TRANS:
            if cur.cls in ('valu',) and vw & set(cur.rd): n = max(n, 1)
        if sw & set(cur.rd):
            if cur.cls == 'vmem': n = max(n, 5)
            elif cur.op.startswith('v_readlane') or cur.op.startswith('v_writelane'): n = max(n, 4)
            elif cur.cls == 'valu': n = max(n, 2)
            elif cur.cls in ('salu', 'smem'): n = max(n, 1)
        if 'dpp' in cur.text and vw & set(cur.rd): n = max(n, 2)
    if prev.cls == 'salu' and ('s', 'm0') in pw and ('s', 'm0') in cur.rd and cur.cls == 'vmem': n = max(n, 1)
    if prev.cls == 'mfma':
        p = prev.passes
        full = {4: 8, 8: 12}[p]; part = {4: 6, 8: 10}[p]; war = {4: 3, 8: 7}[p]
        if cur.cls == 'mfma':
            if pw & set(cur.ab): n = max(n, full)
            if pw & set(cur.srcc):
                if not (cur.srcc == prev.wr and cur.op == prev.op): n = max(n, part)
            elif pw & set(cur.wr): n = max(n, part)
        elif cur.cls in ('valu', 'ds', 'vmem'):
            if pw & (set(cur.rd) | set(cur.wr)): n = max(n, full)
            if cur.cls == 'valu' and set(prev.srcc) & set(cur.wr): n = max(n, war)
    if prev.cls == 'vmem' and hasattr(prev, 'store') and len(prev.store) >= 3:
        if set(prev.store) & set(cur.wr): n = max(n, 2)
    return n

def relaxed(p, cur, n, nm):
    if p.cls == 'mfma' and n <= 8 and nm >= 4: return True
    if p.cls == 'mfma' and n <= 12 and nm >= 5: return True
    return False

def check(seq, name='', fix=False):
    errs = []
    lg = []
    vm = []
    for i, cur in enumerate(seq):
        if cur.states() == 0: continue
        dist = 0; nm = 0
        for j in range(i - 1, max(-1, i - 40), -1):
            p = seq[j]
            if p.states() == 0: continue
            n = need(p, cur)
            if relaxed(p, cur, n, nm): n = 0
            if p.cls == 'mfma': nm += 1
            if n > dist: errs.append((i, n - dist, f'{name}: hazard need {n} have {dist}: [{p.text.strip()}] -> [{cur.text.strip()}]'))
            dist += p.states()
            if dist >= 20: break
        if cur.op == 's_waitcnt':
            m = re.search(r'lgkmcnt\((\d+)\)', cur.text)
            if m:
                k = int(m.group(1))
                if 'either scalar' in cur.text: continue
                if any(x.cls == 'smem' for x in lg) and k > 0: errs.append((i, 0, f'{name}: counted lgkm wait with smem outstanding'))
                lg = lg[len(lg) - k:] if k and len(lg) > k else ([] if k == 0 else lg)
            m = re.search(r'vmcnt\((\d+)\)', cur.text)
            if m:
                k = int(m.group(1))
                vm = vm[len(vm) - k:] if k and len(vm) > k else ([] if k == 0 else vm)
        else:
            touched = set(cur.rd) | set(cur.wr)
            if 'sentinel' in cur.text: touched = set()
            for x in lg + vm:
                if set(x.wr) & touched:
                    errs.append((i, 0, f'{name}: unwaited load [{x.text.strip()}] used by [{cur.text.strip()}]'))
            if cur.cls in ('ds', 'smem'): lg.append(cur)
            if cur.cls == 'vmem': vm.append(cur)
            if len(lg) > 15 and False: errs.append((i, 0, f'{name}: >15 lgkm outstanding'))
    return errs

class Block:
    def __init__(self): self.ins = []
    def __call__(self, text):
        for line in text.strip('\n').split('\n'):
            if line.strip(): self.ins.append(Ins(line))
        return self
    def extend(self, other): self.ins += other.ins; return self
    def autonop(self, ctx=()):
        out = list(ctx); n0 = len(out)
        for cur in self.ins:
            if cur.states():
                dist = 0; add = 0; nm = 0
                for p in reversed(out[-40:]):
                    if p.states() == 0: continue
                    n = need(p, cur)
                    if relaxed(p, cur, n, nm): n = 0
                    if p.cls == 'mfma': nm += 1
                    add = max(add, n - dist)
                    dist += p.states()
                    if dist >= 20: break
                if add > 0: out.append(Ins(f'  s_nop {add - 1}'))
            out.append(cur)
        self.ins = out[n0:]
        return self
    def text(self):
        return '\n'.join((i.text.strip() if i.label or i.directive else '  ' + i.text.strip()) for i in self.ins) + '\n'
```

```python
from asmlib import *

SCC_W = ('s_add_', 's_sub_', 's_cmp', 's_and_', 's_or_', 's_lshl', 's_lshr', 's_min', 's_max', 's_bfe', 's_xor', 's_addc', 's_addk')
SCC_R = ('s_cselect', 's_cbranch_scc', 's_addc')

class Op:
    def __init__(self, text, after=(), at=0, hi=None, vm=None, drain=False, space=0, prio=0):
        self.ins = Ins(text); self.after = list(after); self.at = at; self.hi = hi; self.vm = vm; self.drain = drain
        self.space = space; self.prio = prio
        i = self.ins
        self.rd = set(i.rd); self.wr = set(i.wr)
        if any(i.op.startswith(p) for p in SCC_W): self.wr.add(('s', 'scc'))
        if any(i.op.startswith(p) for p in SCC_R): self.rd.add(('s', 'scc'))
        if i.op.startswith('s_addk'): self.rd |= set(i.wr)
        self.cls = i.cls
        o = i.op
        self.pk = o.startswith('v_pk_') and o != 'v_pk_mov_b32'
        if self.cls == 'valu':
            self.cost = 8 if (o in TRANS or o.startswith('v_permlane') or o.startswith('v_readlane')) else 4
        elif self.cls == 'ds': self.cost = 12 if o.startswith('ds_write') else 8
        elif self.cls == 'vmem': self.cost = 8
        elif o == 's_barrier': self.cost = 24
        elif o.startswith('s_cbranch'): self.cost = 12
        else: self.cost = 4

DS_LAT = 110

def step(prev, cur):
    if prev is None: return 0
    if prev.cls == 'mfma': return 8 if cur.cls in ('valu', 'vmem', 'mfma') else 4
    if prev.cls == 'valu': return prev.cost + (4 if cur.cls in ('ds', 'vmem') else 0)
    if prev.cls == 'ds': return prev.cost - 4 if cur.cls == 'ds' else prev.cost
    return prev.cost

def schedule(ops, ctx=(), vm_before=(), verbose=None):
    mf = [o for o in ops if o.cls == 'mfma']; nm = len(mf)
    midx = {id(o): k for k, o in enumerate(mf)}
    preds = {id(o): [] for o in ops}; succs = {id(o): [] for o in ops}
    lastw = {}; readers = {}; lastmem = {}
    inreg = {id(o) for o in ops}
    for o in ops:
        deps = {}
        def D(x, k):
            if id(x) in inreg and x is not o: deps.setdefault(id(x), [x, set()])[1].add(k)
        for r in o.rd:
            if r in lastw: D(lastw[r], 'raw')
        for r in o.wr:
            if r in lastw: D(lastw[r], 'waw')
            for x in readers.get(r, []): D(x, 'war')
        for x in o.after: D(x, 'ord')
        for x in (o.vm or []): D(x, 'ord')
        if o.cls == 'vmem':
            if 'vmem' in lastmem: D(lastmem['vmem'], 'ord')
            lastmem['vmem'] = o
        for a, kinds in deps.values():
            lat = 0
            if a.cls == 'ds' and (kinds & {'raw', 'waw'} or o.drain): lat = DS_LAT
            elif a.cls == 'mfma' and kinds & {'raw', 'waw'} and o.cls != 'mfma': lat = 36
            elif a.cls == 'valu' and 'raw' in kinds and any(r[0] == 's' for r in a.wr & o.rd): lat = 28
            preds[id(o)].append((a, lat)); succs[id(a)].append((o, lat))
        for r in o.rd: readers.setdefault(r, []).append(o)
        for r in o.wr: lastw[r] = o; readers[r] = []
    INF = 10 ** 7
    dl = {}
    for pos, o in reversed(list(enumerate(ops))):
        if o.cls == 'mfma': dl[id(o)] = midx[id(o)] * 16; continue
        d = INF + pos * 16 if o.hi is None else o.hi * 16
        for s, lat in succs[id(o)]: d = min(d, dl[id(s)] - lat - o.cost)
        dl[id(o)] = d - o.prio
    order = {id(o): i for i, o in enumerate(ops)}
    todo = sorted((o for o in ops if o.cls != 'mfma'), key=lambda o: (dl[id(o)], order[id(o)]))
    when = {}; seq = []; hist = list(ctx)
    prev = None; tprev = 0; tm = -16; mi = 0; nosalu = -100; lastcls = {}
    def nops(o):
        dist = 0; add = 0; k = 0
        for p in reversed(hist[-40:]):
            if p.states() == 0: continue
            n = need(p, o.ins)
            if relaxed(p, o.ins, n, k): n = 0
            if p.cls == 'mfma': k += 1
            add = max(add, n - dist); dist += p.states()
            if dist >= 20: break
        return add
    def earliest(o):
        t = max(tprev + step(prev, o), o.at)
        for p, lat in preds[id(o)]:
            if id(p) not in when: return None
            t = max(t, when[id(p)] + lat)
        if o.cls == 'mfma': t = max(t, tm + 16)
        if o.pk: t = max(t, tm + 28)
        if o.cls == 'valu' or o.cls == 'vmem': t = max(t, tm + 8)
        if o.cls == 'salu': t = max(t, nosalu)
        if o.space and o.cls in lastcls: t = max(t, lastcls[o.cls] + o.space)
        t = max(t, tprev + step(prev, o) + 4 * nops(o))
        return t
    while todo or mi < nm:
        m = mf[mi] if mi < nm else None
        hard = m is not None and any(o.hi is not None and o.hi <= mi for o in todo)
        tmf = earliest(m) if (m is not None and not hard) else None
        best = None
        cands = []
        for o in todo:
            t = earliest(o)
            if t is not None: cands.append((o, t))
        if tmf is not None:
            fit = [(o, t) for o, t in cands if t + step(o, m) <= tmf]
            if fit:
                best = fit[0]
                if prev is not None and prev.cls == 'mfma' and best[0].cls == 'valu':
                    room = tmf - (tprev + 8) - best[0].cost
                    for o, t in fit:
                        if o.cls in ('salu', 'smem') and o.cost == 4 and t <= tprev + 4: best = (o, t); break
                        if o.cls == 'ds' and t <= tprev + 4 and room >= o.cost - 4: best = (o, t); break
            else: best = (m, tmf)
        else:
            assert cands, 'deadlock: ' + ', '.join(o.ins.text for o in todo[:5])
            now = min(t for _, t in cands)
            urgent = cands[0]
            best = urgent
            for o, t in cands:
                if o is urgent[0]: continue
                if t + step(o, urgent[0]) <= urgent[1]: best = (o, t); break
        o, t = best
        when[id(o)] = t; seq.append(o); hist.append(o.ins)
        if o.cls == 'mfma': tm = t; mi += 1
        else: todo.remove(o)
        if o.cls == 'valu' and any(r[0] == 's' for r in o.wr): nosalu = t + 32
        lastcls[o.cls] = t
        prev = o; tprev = t
    out = []; pend = []
    for o in seq:
        touched = o.rd | o.wr
        hit = [i for i, x in enumerate(pend) if x.wr & touched]
        if o.drain and pend: hit = [len(pend) - 1]
        if hit:
            k = max(hit)
            while k + 1 < len(pend) and when[id(pend[k + 1])] + DS_LAT + 16 <= when[id(o)]: k += 1
            j = len(out) - 1
            while j >= 0 and out[j].cls != 'mfma': j -= 1
            nds = sum(1 for x in out[j + 1:] if x.cls == 'ds')
            if j >= 0 and len(pend) - 1 - k >= nds and when[id(pend[k])] + DS_LAT - 16 <= when[id(out[j])]:
                w = Op(f's_waitcnt lgkmcnt({min(15, len(pend) - 1 - k - nds)})'); when[id(w)] = when[id(out[j])]; out.insert(j + 1, w)
            else:
                w = Op(f's_waitcnt lgkmcnt({min(15, len(pend) - 1 - k)})'); when[id(w)] = when[id(o)]; out.append(w)
            pend = pend[k + 1:]
        out.append(o)
        if o.cls == 'ds': pend.append(o)
    issued = list(vm_before)
    for o in out:
        if o.cls == 'vmem': issued.append(o)
        if o.vm is not None:
            last = max(issued.index(x) for x in o.vm)
            o.ins = Ins(f's_waitcnt vmcnt({len(issued) - 1 - last})')
    blk = Block(); blk.ins = [o.ins for o in out]
    blk.issued = issued; blk.pend = pend
    if verbose:
        print(f'sched {verbose}: {nm} mfma, {len(out)} instrs, est cycles {tprev}, last mfma at {tm}')
    blk.when = [(when[id(o)], o.ins.text) for o in out]
    return blk
```

```python
import sys, struct
from asmlib import *
from sched import *

NAME = 'standalone__paged_block_table_kv_pagedattention__prompt'
opt = dict(ts=0, fine=0, dspace=64, warm=1, owarm=0, tg1=800, variant=-1, force_slow=0, cpf=1, sspace=0, dump=0, tq0=100, tq1=1400, tq2=2600, tq3=3900, tg0=600)
for a in sys.argv[2:]:
    k, v = a.split('='); opt[k] = int(v)

PS = 1056
US = 8 * PS
PR = 2 * US
KB = 0; VB = 3 * PR; QB = VB + 2 * PR
QW = 16384
LDS = 163840
f2u = lambda x: struct.unpack('<I', struct.pack('<f', x))[0]
CSCALE = f2u(1.4426950408889634 / 128 ** 0.5)
LMAX = f2u(2.0 ** 40)

vO = lambda qb, db: 128 + qb * 32 + db * 4
vS = lambda e: 96 + e
vP = lambda buf, j: 64 + buf * 16 + j
vC = lambda qb: 48 + qb * 4
vL = lambda pr: 40 + pr * 4
vA = 36; vIdx = 35; vK = 34; vV = 33; vTab = 32; vOff = 28
vK0 = 27; vV0 = 26; vLane = 25; vOo = 24; vKey = 23; vVl = 22; vKh = 21; vVh = 20
vQoff = 16
vQr = 4
vM = 8
aQ = lambda qb, ks: qb * 16 + ks * 4
aKm = 64; aVm = 96; aX = lambda i: 96 + 32 * i
R = lambda k, b, n=4: f'{k}[{b}:{b + n - 1}]'
sQ = 20; sKV = 24; sO = 28; sBT = 32; sKs = 36; sVs = 40
sW = 44; sHead = 45; sCl = 47; sF = 48; sIt = 49; sRd = 50; sWb = 51; sU = 52; sPg = 53; sQw = 55; sRem = 54; sVar = 46
sScale = 56
sT = 58; sT2 = 59
sQo = 60
NREC = 132 * 131072
sTS = 64
sX = 98

tsn = [0]
def TS(b):
    if opt['ts']:
        b(f'{"s_memtime" if opt["ts"] == 2 else "s_memrealtime"} s[{sTS + 2 * tsn[0]}:{sTS + 2 * tsn[0] + 1}]'); tsn[0] += 1

def mf(d, a, bb, c): return f'v_mfma_f32_16x16x32_bf16 {d}, {a}, {bb}, {c}'
def qk(qb, kb, ks, c0, kreg=aKm, sreg=None):
    d = R('v', (vS(qb * 8) if sreg is None else sreg) + kb * 4)
    return mf(d, R('a', kreg + (kb * 4 + ks) * 4), R('a', aQ(qb, ks)), d if ks else c0)
def pv(qb, db, preg, vreg=aVm, zero=False):
    d = R('v', vO(qb, db))
    return mf(d, R('a', vreg + db * 4), R('v', preg), '0' if zero else d)
def smf(dst, preg): return f'v_smfmac_f32_16x16x64_bf16 {R("v", dst)}, {R("v", vA)}, {R("v", preg, 8)}, v{vIdx}'
def exr(r): return f'v_exp_f32 v{r}, v{r}'
def cvr(p, r): return f'v_cvt_pk_bf16_f32 v{p}, v{r}, v{r + 1}'
def ex(e): return exr(vS(e))
def cv(j, buf): return cvr(vP(buf, j), vS(2 * j))
def rdK(i, off, va=vK, kreg=aKm): return f'ds_read_b128 {R("a", kreg + i * 4)}, v{va} offset:{off + (i // 4) * 512 + (i % 4) * 64}'
def rdV(i, off, va=vV, vreg=aVm): return f'ds_read_b64_tr_b16 {R("a", vreg + i * 2, 2)}, v{va} offset:{off + (i % 2) * 512 + (i // 2) * 32}'
def dma(i, srd=sKV, so=sPg): return f'buffer_load_dwordx4 v{vOff + i}, {R("s", srd)}, s{so} offen offset:{i * PS} lds'

pro = Block(); b = pro
b(f"""
s_cmpk_ge_u32 s2, 256
s_cbranch_scc1 L_end
s_load_dwordx2 s[{sQ}:{sQ + 1}], s[0:1], 0
s_load_dwordx2 s[{sKs}:{sKs + 1}], s[0:1], 8
s_load_dwordx16 s[4:19], s[0:1], 0
""")
TS(b)
if opt['cpf']:
    b(f"""
s_cmp_ge_u32 s2, 8
s_cbranch_scc1 L_nopf
s_getpc_b64 s[{sX}:{sX + 1}]
L_pf:
v_lshlrev_b32 v1, 6, v0
global_load_dword a255, v1, s[{sX}:{sX + 1}]
L_nopf:
""")
b(f"""
v_readfirstlane_b32 s{sW}, v0
v_and_b32 v{vLane}, 63, v0
v_lshrrev_b32 v2, 4, v{vLane}
v_xor_b32 v3, v{vLane}, v2
v_lshlrev_b32 v{vQoff}, 4, v3
v_xor_b32 v{vQoff + 1}, 64, v{vQoff}
v_xor_b32 v{vQoff + 2}, 0x80, v{vQoff}
v_xor_b32 v{vQoff + 3}, 64, v{vQoff + 2}
s_and_b32 s{sHead}, s2, 7
s_lshl_b32 s{sHead}, s{sHead}, 5
s_lshr_b32 s{sT}, s2, 3
s_add_u32 s{sHead}, s{sHead}, s{sT}
s_lshl_b32 s{sQo}, s{sHead}, 16
s_lshl_b32 s{sQw}, s{sW}, 8
s_add_u32 s{sQo}, s{sQo}, s{sQw}
s_add_u32 m0, s{sQw}, {QB}
s_lshr_b32 s{sT2}, s{sW}, 4
s_mov_b32 s{sQ + 2}, 16777216
s_mov_b32 s{sQ + 3}, 0x20000
s_bfe_u32 s{sU}, s{sW}, 0x10006
s_lshl1_add_u32 s{sT}, s{sT}, s{sU}
s_mul_i32 s{sT}, s{sT}, {NREC // 64}
s_mov_b32 s{sPg}, -1
s_cmp_lt_u32 s{sT2}, 8
s_waitcnt lgkmcnt(0)
s_load_dword s{sPg}, s[10:11], s{sT2}
s_cselect_b64 s[{sKV}:{sKV + 1}], s[6:7], s[8:9]
""")
if opt['warm']: b(f's_load_dword s{sU}, s[{sKV}:{sKV + 1}], s{sT}')
def qd(p, so): return f'buffer_load_dwordx4 v{vQoff + p}, {R("s", sQ)}, s{so} offen offset:{p * 1024} nt lds'
for p in range(4): b(qd(p, sQo))
b('L_e256:')
b(f"""
s_lshr_b32 s{sHead}, s{sHead}, 3
s_lshl_b32 s{sHead}, s{sHead}, 8
v_and_b32 v3, 15, v{vLane}
v_lshl_add_u32 v4, v2, 13, s{sHead}
v_lshl_add_u32 v{vOff}, v3, 4, v4
s_mul_i32 s{sWb}, s{sT2}, {PS}
s_add_u32 m0, s{sWb}, {KB + 2 * PR}
s_mov_b32 s{sKs + 2}, {NREC}
s_mov_b32 s{sKs + 3}, 0x20000
v_add_u32 v{vOff + 1}, {32768 - PS}, v{vOff}
v_add_u32 v{vOff + 2}, {2 * (32768 - PS)}, v{vOff}
v_add_u32 v{vOff + 3}, {3 * (32768 - PS)}, v{vOff}
v_bfe_u32 v1, v0, 6, 1
v_lshl_add_u32 v1, v{vLane}, 1, v1
v_lshlrev_b32 v1, 2, v1
s_add_u32 s{sQw}, s{sQw}, {QB}
s_add_u32 s{sQo + 1}, s{sQo}, 4096
""")
if opt['warm']: b(f's_waitcnt lgkmcnt(1)\ns_cmp_lg_u32 s{sPg}, -1 ; sentinel\ns_cbranch_scc1 L_gotpg')
b(f's_waitcnt lgkmcnt(0)\nL_gotpg:\ns_lshl_b32 s{sPg}, s{sPg}, 17\ns_load_dword s{sCl}, s[12:13], 0')
if opt['owarm']: b(f's_load_dword s{sVar}, s[14:15], s{sQo}')
TS(b)
for i in range(4): b(dma(i, sKs))
b(f'global_load_dword v{vTab}, v1, s[10:11]\ns_add_u32 m0, s{sQw}, 4096')
for p in range(4): b(qd(p, sQo + 1))
b(f"""
s_lshr_b32 s{sW}, s{sW}, 6
s_add_u32 s{sQo + 2}, s{sQo}, 8192
s_add_u32 s{sQo + 3}, s{sQo}, 12288
s_mov_b32 s{sVs}, s8
s_mov_b32 s{sVs + 1}, s9
s_mov_b32 s{sVs + 2}, {NREC}
s_mov_b32 s{sVs + 3}, 0x20000
s_mov_b32 s{sKV + 2}, {NREC}
s_mov_b32 s{sKV + 3}, 0x20000
s_mov_b32 s{sO}, s14
s_mov_b32 s{sO + 1}, s15
s_mov_b32 s{sO + 2}, 16777216
s_mov_b32 s{sO + 3}, 0x20000
s_cmp_lt_u32 s{sW}, 2
s_cselect_b32 s{sT}, {KB}, {VB - US}
s_add_u32 s{sWb}, s{sWb}, s{sT}
v_and_b32 v4, 7, v3
v_lshrrev_b32 v5, 3, v3
v_mul_u32_u24 v6, {PS}, v4
v_lshl_add_u32 v6, v5, 8, v6
v_lshl_add_u32 v{vK0}, v2, 4, v6
v_and_b32 v7, 1, v2
v_lshrrev_b32 v8, 1, v2
v_lshlrev_b32 v6, 8, v3
v_lshl_add_u32 v6, v7, 5, v6
v_lshl_add_u32 v{vOo}, v8, 4, v6
v_lshl_add_u32 v{vKey}, v7, 4, v8
v_bfe_u32 v4, v{vLane}, 2, 3
v_mul_u32_u24 v6, {PS}, v4
v_lshl_add_u32 v6, v8, 8, v6
v_and_b32 v4, 3, v{vLane}
v_lshl_add_u32 v6, v4, 3, v6
v_add_u32 v{vV0}, {VB}, v6
v_lshrrev_b32 v5, 2, v3
v_mul_u32_u24 v6, {PS}, v5
v_lshl_add_u32 v6, v4, 8, v6
v_lshl_add_u32 v{vKh}, v2, 4, v6
v_mul_u32_u24 v6, {PS}, v2
v_lshl_add_u32 v6, v5, 8, v6
v_lshl_add_u32 v6, v4, 3, v6
v_add_u32 v{vVh}, {VB}, v6
v_bfe_u32 v4, v{vLane}, 1, 1
v_cmp_eq_u32 vcc, v4, v8
v_mov_b32 v5, 0x3f803f80
v_and_b32 v4, 1, v{vLane}
v_cndmask_b32 v{vA}, 0, v5, vcc
v_cndmask_b32 v{vA + 1}, 0, v5, vcc
v_cndmask_b32 v{vA + 2}, 0, v5, vcc
v_cndmask_b32 v{vA + 3}, 0, v5, vcc
v_mul_u32_u24 v4, 0xaaaa, v4
v_add_u32 v{vIdx}, 0x4444, v4
v_lshlrev_b32 v12, 2, v2
v_xor_b32 v4, v2, v3
v_lshlrev_b32 v4, 4, v4
v_lshl_add_u32 v4, v3, 8, v4
v_add_u32 v{vQr}, s{sQw}, v4
v_xor_b32 v{vQr + 1}, 64, v{vQr}
v_xor_b32 v{vQr + 2}, 0x80, v{vQr}
v_xor_b32 v{vQr + 3}, 64, v{vQr + 2}
s_waitcnt lgkmcnt(0)
s_cmp_lt_u32 s{sW}, 2
s_cselect_b32 s{sU}, 2, 0
s_mov_b32 s{sScale}, {CSCALE:#x}
s_cmp_lt_i32 s{sCl}, 1
s_cselect_b32 s{sScale}, 0, s{sScale}
s_cselect_b32 s{sCl}, 2048, s{sCl}
s_min_u32 s{sCl}, s{sCl}, 2048
s_sub_u32 s{sF}, s{sCl}, 1
s_lshr_b32 s{sF}, s{sF}, 5
s_mov_b32 s{sScale + 1}, s{sScale}
s_cmp_lt_u32 s{sF}, 3
s_cbranch_scc1 L_slow0
""")
if opt['force_slow'] == 1: b('s_branch L_slow0')
pro.autonop()
pro2 = Block(); b = pro2
def zero_acc(b):
    for r in range(128, 256, 2): b(f'v_mov_b64 v[{r}:{r + 1}], 0')
b(f's_lshl_b32 s{sT}, s{sF}, 5\ns_sub_u32 s{sRem}, s{sCl}, s{sT}\nv_mov_b32 v2, 0xff800000')
for r in range(4):
    b(f'v_add_u32 v1, {r}, v12\nv_cmp_le_u32 vcc, s{sRem}, v1\nv_cndmask_b32 v{vM + r}, 0, v2, vcc')
for r in range(40, 48, 2): b(f'v_mov_b64 v[{r}:{r + 1}], 0')
b(f"""
v_mov_b32 v{vK}, v{vK0}
v_mov_b32 v{vV}, v{vV0}
s_mov_b32 s{sRd}, 0
s_sub_u32 s{sIt}, s{sF}, 1
s_lshr_b32 s{sIt}, s{sIt}, 1
s_and_b32 s{sVar}, s{sF}, 1
s_cmp_gt_u32 s{sRem}, 16
s_cselect_b32 s{sT}, 2, 0
s_or_b32 s{sVar}, s{sVar}, s{sT}
""")
if opt['ts']: b('s_waitcnt lgkmcnt(0)')
pro2.autonop(pro.ins)

RQ = 224; TQ = 240; SA = 248
def qload(qb): return [f'ds_read_b128 {R("v", RQ + ks * 4)}, v{vQr + ks} offset:{qb * 4096}' for ks in range(4)]
def qscale(qb, pk=True):
    L = []
    for i in range(16):
        t = TQ + (i % 4) * 2
        L += [f'v_lshlrev_b32 v{t}, 16, v{RQ + i}', f'v_and_b32 v{t + 1}, 0xffff0000, v{RQ + i}']
        if pk: L += [f'v_pk_mul_f32 v[{t}:{t + 1}], v[{t}:{t + 1}], s[{sScale}:{sScale + 1}]']
        else: L += [f'v_mul_f32 v{t}, s{sScale}, v{t}', f'v_mul_f32 v{t + 1}, s{sScale}, v{t + 1}']
        L += [f'v_cvt_pk_bf16_f32 v{t}, v{t}, v{t + 1}', f'v_accvgpr_write_b32 a{qb * 16 + i}, v{t}']
    return L
def rowmax(s, dst, t):
    return f'''v_max3_f32 v{dst}, v{s}, v{s + 1}, v{s + 2}
v_max3_f32 v{t}, v{s + 3}, v{s + 4}, v{s + 5}
v_max3_f32 v{dst}, v{dst}, v{s + 6}, v{s + 7}
v_max_f32 v{dst}, v{dst}, v{t}
v_mov_b32 v{t}, v{dst}
v_permlane32_swap_b32 v{dst}, v{t}
v_max_f32 v{dst}, v{dst}, v{t}
v_mov_b32 v{t}, v{dst}
v_permlane16_swap_b32 v{dst}, v{t}
v_max_f32 v{dst}, v{dst}, v{t}'''.split('\n')

ops = []
A = lambda t, **kw: (ops.append(Op(t, **kw)), ops[-1])[1]
pre_vm = [Op(qd(0, sQo)) for _ in range(13)]
Q = {0: pre_vm[0:4], 1: pre_vm[9:13]}; G = {0: pre_vm[4:9]}
def stamp(after):
    if opt['ts'] and opt['fine']:
        x = Block(); TS(x)
        o = A(x.ins[0].text, after=after, prio=10 ** 6); o.cls = 'salu'
        return [A('s_waitcnt lgkmcnt(0)', after=[o], prio=10 ** 6)]
    return after
HP = 100000
def issueQ(qb, after):
    A(f's_add_u32 m0, s{sQw}, {qb * 4096}', after=after, prio=HP)
    Q[qb] = [A(qd(p, sQo + qb), after=after, prio=HP, space=opt['dspace']) for p in range(4)]
def issueG(n, after, prio=HP, hi=None):
    kw = dict(after=after, prio=prio, hi=hi)
    A(f's_add_u32 m0, s{sWb}, {(n - 1) * US}', **kw)
    A(f'v_readlane_b32 s{sPg}, v{vTab}, s{sU}', **kw)
    G[n] = [A(dma(i), space=opt['dspace'], **kw) for i in range(4)]
    A(f's_add_u32 s{sU}, s{sU}, 1', **kw)
def vmwait(lst, at, after=()): return A('s_waitcnt vmcnt(0)', vm=lst, at=at, after=after)
ldsreads = []
def prep(qb, after, pk):
    for t in qload(qb): ldsreads.append(A(t, after=after))
    for t in qscale(qb, pk): A(t)
def QK(qb, c0, kreg, sreg=None, kmajor=False):
    seq = [(kb, ks) for ks in range(4) for kb in range(2)] if kmajor else [(kb, ks) for kb in range(2) for ks in range(4)]
    for kb, ks in seq: A(qk(qb, kb, ks, c0(kb), kreg, sreg))
def SM0(qb, s):
    d, t = (1, 2) if qb % 2 == 0 else (3, 13)
    for x in rowmax(s, d, t): A(x)
    for r in range(4): A(f'v_sub_f32 v{vC(qb) + r}, 0, v{d}')
    for j in range(4):
        for e in (2 * j, 2 * j + 1): A(f'v_sub_f32 v{s + e}, v{s + e}, v{d}'); A(exr(s + e))
        A(cvr(vP(0, qb * 4 + j), s + 2 * j))
def SM1(qb):
    for e in range(qb * 8, min(qb * 8 + 8, 27)):
        A(ex(e))
        if e % 2: A(cv(e // 2, 1))
cm = lambda kb: '0'
tq = [opt['tq0'], opt['tq1'], opt['tq2'], opt['tq3']]
cq = lambda q: (lambda kb: R('v', vC(q)))
def PV0(q):
    for db in range(8): A(pv(q, db, vP(0, q * 4), zero=True))
def stage(q):
    QK(q, cm, aX(1), SA, kmajor=True); SM0(q, SA)
    QK(q, cq(q), aX(2)); SM1(q)
w = vmwait(Q[0], tq[0]); w0 = stamp([w])
issueQ(2, w0); prep(0, w0, True)
w = vmwait(G[0], tq[0] + opt['tg0'], w0)
A(f'v_lshlrev_b32 v{vTab}, 17, v{vTab}', after=[w], prio=HP); issueG(1, [w])
b1 = stamp([A('s_barrier', after=[w])])
for i in (0, 4, 1, 5, 2, 6, 3, 7): ldsreads.append(A(rdK(i, 2 * PR, vK0, aX(1)), after=b1))
for i in range(8): ldsreads.append(A(rdK(i, 2 * PR + US, vK0, aX(2)), after=b1))
stage(0)
w = vmwait(Q[1], tq[1], b1); w1 = stamp([w])
issueQ(3, w1); prep(1, w1, True)
stage(1)
w = vmwait(Q[2], tq[2], w1); w2 = stamp([w])
issueG(2, w2); prep(2, w2, True)
w = vmwait(G[1], tq[2] + opt['tg1'], w2); issueG(3, [w], prio=0)
b2 = [A('s_barrier', after=[w])]
for i in range(16): A(rdV(i, 0), after=b2)
stage(2)
PV0(0); PV0(1); A(smf(vL(0), vP(0, 0))); PV0(2)
for i in range(8): A(rdK(i, 0), after=b2)
w2 = b2
w = vmwait(Q[3], tq[3], w2); w3 = stamp([w])
prep(3, w3, True)
issueG(4, w3, prio=0)
nmf = sum(1 for o in ops if o.cls == 'mfma')
w = vmwait(G[2], tq[3] + 300, w3)
b3 = [A('s_barrier', after=[w] + ldsreads, drain=True)]
issueG(5, b3, prio=0, hi=nmf + 24)
A(f's_add_u32 m0, s{sWb}, {5 * US}')
stage(3); PV0(3); A(smf(vL(1), vP(0, 8)))
front = schedule(ops, ctx=pro2.ins, vm_before=pre_vm, verbose='front')
if opt['dump'] == 1:
    for t, x in front.when: print(t, x)
if front.pend or opt['ts']: front('s_waitcnt lgkmcnt(0)')
TS(front)
front('s_branch L_mid')
front.autonop(pro2.ins)

def period(u, last=False):
    m = [qk(qb, kb, ks, R('v', vC(qb))) for qb in range(4) for kb in range(2) for ks in range(4)]
    m += [pv(qb, db, vP(u, qb * 4)) for qb in range(4) for db in range(8)]
    m += [smf(vL(0), vP(u, 0)), smf(vL(1), vP(u, 8))]
    sal = [[] for _ in m]; mem = [[] for _ in m]; val = [[] for _ in m]
    for k, e in enumerate(range(27, 32)): val[2 * k].append(ex(e))
    for e in range(27): val[10 + 2 * e].append(ex(e))
    for k, j in enumerate((13, 14, 15)): val[1 + 4 * k].append(cv(j, u))
    for j in range(13): val[13 + 4 * j].append(cv(j, 1 - u))
    i = 0
    for g in range(1, 22, 2):
        for _ in range(1 if g % 4 == 1 else 2):
            mem[g].append(rdV(i, u * US)); i += 1
    assert i == 16
    for i, g in enumerate((33, 35, 37, 41, 45, 49, 53, 57)): mem[g].append(rdK(i, u * US))
    sal[30].append('s_waitcnt lgkmcnt(0)')
    if not last:
        val[23].append(f'v_readlane_b32 s{sPg}, v{vTab}, s{sU}')
        sal[32].append(f's_cmp_le_u32 s{sU}, s{sF}')
        sal[34].append(f's_cselect_b32 s{sKV + 2}, s{sKs + 2}, 0')
        sal[36].append(f's_add_u32 s{sU}, s{sU}, 1')
        for i, g in enumerate((39, 43, 47, 51)): mem[g].append(dma(i))
    if u == 1 or last:
        sal[10].append(f's_add_u32 s{sT}, s{sRd}, {PR}')
        sal[12].append(f's_cmp_eq_u32 s{sT}, {3 * PR}')
        sal[14].append(f's_cselect_b32 s{sT}, 0, s{sT}')
    if last:
        val[27].append(f'v_add_u32 v{vK0}, s{sT}, v{vV0}')
        sal[63].append('s_waitcnt vmcnt(0) lgkmcnt(0)')
        sal[64].append('s_barrier')
    elif u == 0:
        sal[52].append(f's_add_u32 m0, m0, {US}')
        sal[64].append('s_waitcnt lgkmcnt(0)')
    else:
        sal[52].append(f's_add_u32 m0, s{sWb}, s{sRd}')
        val[27].append(f'v_add_u32 v{vV}, s{sT}, v{vV0}')
        val[59].append(f'v_add_u32 v{vK}, s{sT}, v{vK0}')
        sal[54].append(f's_mov_b32 s{sRd}, s{sT}')
        sal[56].append(f's_sub_u32 s{sIt}, s{sIt}, 1')
        sal[58].append(f's_cmp_lg_u32 s{sIt}, 0')
        sal[63].append('s_waitcnt vmcnt(8) lgkmcnt(0)')
        sal[64].append('s_barrier')
        sal[65].append('s_cbranch_scc1 L_loop')
    blk = Block()
    for g in range(len(m)):
        blk(m[g])
        for x in sal[g] + mem[g] + val[g]: blk(x)
    return blk
p0 = period(0); p1 = period(1)
loop = Block()('.p2align 6')('L_loop:').extend(p0)('L_mid:').extend(p1)

vR = lambda q: 2 + q
def norm_group(qb, m, pk, t):
    o = vO(qb, 2 * m); L = []
    sel = 'op_sel:[0,1] op_sel_hi:[1,1]' if qb % 2 else 'op_sel_hi:[1,0]'
    pr = vR(qb) & ~1
    if pk: L += [f'v_pk_mul_f32 v[{o + i}:{o + i + 1}], v[{o + i}:{o + i + 1}], v[{pr}:{pr + 1}] {sel}' for i in range(0, 8, 2)]
    else: L += [f'v_mul_f32 v{o + i}, v{o + i}, v{vR(qb)}' for i in range(8)]
    L += [f'v_cvt_pk_bf16_f32 v{t + i}, v{o + 2 * i}, v{o + 2 * i + 1}' for i in range(4)]
    L += [f'v_permlane16_swap_b32 v{t}, v{t + 2}', f'v_permlane16_swap_b32 v{t + 1}, v{t + 3}']
    L += [f'buffer_store_dwordx4 {R("v", t)}, v{vOo}, {R("s", sO)}, s{sQo + qb} offen offset:{m * 64} sc1']
    return L
vT = 16
sS = lambda q: 96 + (q % 2) * 16
pP = lambda q: 80 + (q % 2) * 8
def make_tail(T, half, name):
    global ops
    ops = []
    pre_vm = [Op(dma(0)) for _ in range(8)]
    blk = Block()
    if not half:
        blk(f'v_mov_b32 v2, 0xff800000')
        for kb in range(2):
            for r in range(4):
                blk(f'v_add_u32 v1, {4 * r + 2 * kb}, v{vKey}\nv_cmp_le_u32 vcc, s{sRem}, v1\nv_cndmask_b32 v{vM + kb * 4 + r}, 0, v2, vcc')
    for e in range(27, 32): A(ex(e))
    for j in range(13, 16): A(cv(j, 0))
    if T == 2:
        A(f's_add_u32 s{sT}, s{sRd}, {PR}'); A(f's_cmp_eq_u32 s{sT}, {3 * PR}'); A(f's_cselect_b32 s{sT}, 0, s{sT}')
        A(f'v_add_u32 v{vVl}, s{sT}, v{vVh if half else vV0}')
        if half:
            A(f'v_add_u32 v{vKh}, s{sRd}, v{vKh}')
            for i in range(4): A(rdK(i, 0, vKh, aX(1)))
        else:
            for i in range(8): A(rdK(i, 0, vK, aX(1)))
    for i in range(16): A(rdV(i, 0))
    for i in range(16): A(rdV(i, US, vV, aX(2)))
    if T == 2:
        w = A('s_waitcnt vmcnt(0)', vm=pre_vm[:4], at=300)
        bb = [A('s_barrier', after=[w], hi=opt.get('tbar', 30))]
        for i in range(0, 16, 2 if half else 1): A(rdV(i, 0, vVl, aX(3)), after=bb)
    nz = 4 if T == 1 else (2 if half else 0)
    for q in range(2):
        for r in range(8 - nz, 8, 2): A(f'v_mov_b64 v[{pP(q) + r}:{pP(q) + r + 1}], 0')
    def masked(q, kreg, s0):
        for kb in range(1 if half else 2):
            for r in range(4): A(f'v_add_f32 v{s0 + kb * 4 + r}, v{vC(q)}, v{vM + kb * 4 + r}')
            for ks in range(4): A(qk(q, kb, ks, R('v', s0 + kb * 4), kreg, s0))
    def tQK(q):
        if T == 2: QK(q, cq(q), aKm, sS(q)); masked(q, aX(1), sS(q) + 8)
        else: masked(q, aKm, sS(q))
        for j in range(8 - nz): A(exr(sS(q) + 2 * j)); A(exr(sS(q) + 2 * j + 1)); A(cvr(pP(q) + j, sS(q) + 2 * j))
    def tPV0(q):
        for db in range(8): A(pv(q, db, vP(0, q * 4)))
    def tPV12(q):
        A(f'v_mov_b64 v[{vT}:{vT + 1}], v[{vL(0) + 2 * q}:{vL(0) + 2 * q + 1}]'); A(f'v_mov_b64 v[{vT + 2}:{vT + 3}], 0')
        k = 4 if T == 2 else 0
        for db in range(k): A(pv(q, db, pP(q), aX(2)))
        A(smf(vT, pP(q)))
        for db in range(k, 8): m = A(pv(q, db, pP(q), aX(2)))
        if T == 2:
            for db in range(8):
                if half:
                    d = R('v', vO(q, db))
                    m = A(f'v_mfma_f32_16x16x16_bf16 {d}, {R("a", aX(3) + db * 4, 2)}, {R("v", pP(q) + 4, 2)}, {d}')
                else: m = A(pv(q, db, pP(q) + 4, aX(3)))
        A(f'v_add_f32 v1, v{vT}, v{vT + 1}'); A(f'v_add_f32 v6, v{vT + 2}, v{vT + 3}'); A(f'v_add_f32 v1, v1, v6')
        A(f'v_rcp_f32 v{vR(q)}, v1')
        A(f'v_add_f32 v7, v7, v1' if q else 'v_mov_b32 v7, v1')
        return m
    def tnorm(q, his, lastm=None):
        for m in range(4):
            pk = his[m] is None
            for t in norm_group(q, m, pk, vO(q, 2 * m)): A(t, after=[lastm] if pk else [], hi=his[m], space=opt['sspace'] if t.startswith('buffer') else 0)
    cnt = lambda: sum(1 for o in ops if o.cls == 'mfma')
    tQK(0); A(smf(vL(0), vP(0, 0))); tPV0(0); tQK(1); A(smf(vL(1), vP(0, 8)))
    tPV12(0); n0 = cnt(); o0 = ops; ops = []
    tPV0(1); tQK(2); tPV12(1); per = cnt(); o1 = ops; ops = o0
    st = [per * (i + 1) // 4 - 2 for i in range(4)]
    tnorm(0, [n0 + x for x in st]); ops += o1
    n = cnt(); tnorm(1, [n + x for x in st])
    tPV0(2); tQK(3); tPV12(2); n = cnt(); tPV0(3); lastm = tPV12(3); rest = cnt() - n
    tnorm(2, [n + x if x < rest else None for x in st], lastm); tnorm(3, [None] * 4, lastm)
    tl = schedule(ops, ctx=loop.ins + blk.ins, vm_before=pre_vm, verbose=name)
    if opt['dump'] == 2 and half:
        for t, x in tl.when: print(t, x)
    if opt['ts'] and half:
        k = max(i for i, x in enumerate(tl.ins) if x.cls == 'mfma')
        x = Block(); TS(x); tl.ins.insert(k + 1, x.ins[0])
    blk.extend(tl)
    blk(f'v_cmp_nge_f32 vcc, {LMAX:#x}, v7\ns_cbranch_vccnz L_slow')
    if opt['force_slow'] == 2: blk('s_branch L_slow')
    return blk
epi = Block()
TS(epi)
if opt['ts']: epi('s_waitcnt lgkmcnt(0)')
epi(f's_cmp_lg_u32 s{sVar}, 0\ns_cbranch_scc1 L_tail2')
epi.extend(make_tail(2, True, 'tail half'))
b = epi
if opt['ts']:
    TS(b)
    b('s_waitcnt vmcnt(0)')
    TS(b)
    n = tsn[0]
    b(f's_waitcnt lgkmcnt(0)\ns_mov_b32 s{sQ}, s18\ns_mov_b32 s{sQ + 1}, s19\ns_lshl_b32 s{sT}, s2, 2\ns_add_u32 s{sT}, s{sT}, s{sW}\ns_lshl_b32 s{sT}, s{sT}, 6\nv_mov_b32 v2, 0')
    for i in range(n):
        b(f'v_mov_b32 v1, s{sTS + 2 * i}\nbuffer_store_dword v1, v2, {R("s", sQ)}, s{sT} offen offset:{4 * i}')
b('L_end:\ns_endpgm')
epi.autonop(loop.ins)
epi2 = Block()(f'L_tail2:\ns_cmp_lg_u32 s{sVar}, 2\ns_cbranch_scc1 L_tail1').extend(make_tail(2, False, 'tail full'))('s_endpgm').autonop(loop.ins)
epi1 = Block()('L_tail1:').extend(make_tail(1, False, 'tail odd'))('s_endpgm').autonop(loop.ins)

slow0 = Block(); b = slow0
b('L_slow0:')
for qb in (2, 3):
    b(f's_add_u32 m0, s{sQw}, {qb * 4096}')
    for p in range(4): b(qd(p, sQo + qb))
b('s_waitcnt vmcnt(0)')
for qb in range(4):
    for t in qload(qb): b(t)
    b('s_waitcnt lgkmcnt(0)')
    for t in qscale(qb): b(t)
slow = Block(); b = slow
b('L_slow:')
vMx = 8; vLs = 12
b(f'''
s_waitcnt vmcnt(0)
s_sub_u32 s{sT}, s{sW}, 1
s_and_b32 s{sT}, s{sT}, 3
s_add_u32 s{sT}, s{sT}, 1
s_mul_i32 s{sT}, s{sT}, {QW}
s_add_u32 s{sWb}, s{sT}, {QB + 512}
v_add_u32 v{vK}, s{sWb}, v{vK0}
s_sub_u32 s{sT}, s{sWb}, {VB}
v_add_u32 v{vV}, s{sT}, v{vV0}
s_mov_b32 s{sU}, 0
''')
zero_acc(b)
for qb in range(4): b(f'v_mov_b32 v{vMx + qb}, 0xff800000\nv_mov_b32 v{vLs + qb}, 0')
sl = Block(); b = sl
b('L_sloop:')
b(f'''
s_lshl_b32 s{sT}, s{sU}, 3
s_load_dwordx2 s[{sX}:{sX + 1}], s[10:11], s{sT}
s_waitcnt lgkmcnt(0)
s_lshl_b32 s{sX}, s{sX}, 17
s_lshl_b32 s{sX + 1}, s{sX + 1}, 17
''')
def sdma(b, srd):
    b(f's_mov_b32 m0, s{sWb}')
    for i in range(4): b(dma(i, srd, sX))
    b(f's_add_u32 m0, s{sWb}, {4 * PS}')
    for i in range(4): b(dma(i, srd, sX + 1))
sdma(b, sKs)
b('s_waitcnt vmcnt(0)')
for i in range(8): b(rdK(i, 0))
b('s_waitcnt lgkmcnt(0)')
sdma(b, sVs)
for qb in range(4):
    for kb in range(2):
        for ks in range(4): b(qk(qb, kb, ks, '0'))
b(f's_lshl_b32 s{sT}, s{sU}, 5\ns_sub_u32 s{sT}, s{sCl}, s{sT}\nv_mov_b32 v5, 0xff800000')
for kb in range(2):
    for r in range(4):
        b(f'v_add_u32 v4, {4 * r + 2 * kb}, v{vKey}\nv_cmp_le_u32 vcc, s{sT}, v4')
        for qb in range(4):
            s = vS(qb * 8 + kb * 4 + r)
            b(f'v_cndmask_b32 v{s}, v{s}, v5, vcc')
for qb in range(4):
    for t in rowmax(vS(qb * 8), 1, 2): b(t)
    b(f'''
v_max_f32 v1, v1, v{vMx + qb}
v_sub_f32 v2, v{vMx + qb}, v1
v_exp_f32 v2, v2
v_mov_b32 v{vMx + qb}, v1
''')
    for e in range(8): b(f'v_sub_f32 v{vS(qb * 8 + e)}, v{vS(qb * 8 + e)}, v1')
    for e in range(8): b(ex(qb * 8 + e))
    b(f'v_mul_f32 v{vLs + qb}, v{vLs + qb}, v2')
    for i in range(32): b(f'v_mul_f32 v{vO(qb, 0) + i}, v{vO(qb, 0) + i}, v2')
    for j in range(4): b(cv(qb * 4 + j, 0))
    for j in range(4):
        b(f'''
v_lshlrev_b32 v3, 16, v{vP(0, qb * 4 + j)}
v_and_b32 v4, 0xffff0000, v{vP(0, qb * 4 + j)}
v_add_f32 v{vLs + qb}, v{vLs + qb}, v3
v_add_f32 v{vLs + qb}, v{vLs + qb}, v4
''')
b('s_waitcnt vmcnt(0)')
for i in range(8): b(rdV(i, 0))
b('s_waitcnt lgkmcnt(0)')
for i in range(8, 16): b(rdV(i, 0))
b('s_waitcnt lgkmcnt(0)')
for qb in range(4):
    for db in range(8): b(pv(qb, db, vP(0, qb * 4)))
b(f'''
s_nop 7
s_add_u32 s{sU}, s{sU}, 1
s_cmp_le_u32 s{sU}, s{sF}
s_cbranch_scc1 L_sloop
''')
se = Block(); b = se
for qb in range(4):
    b(f'''
v_mov_b32 v5, v{vLs + qb}
v_permlane32_swap_b32 v5, v{vLs + qb}
v_add_f32 v{vLs + qb}, v{vLs + qb}, v5
v_mov_b32 v5, v{vLs + qb}
v_permlane16_swap_b32 v5, v{vLs + qb}
v_add_f32 v{vLs + qb}, v{vLs + qb}, v5
''')
for qb in range(4): b(f'v_rcp_f32 v{vR(qb)}, v{vLs + qb}')
for qb in range(4):
    for m in range(4):
        for t in norm_group(qb, m, True, vO(qb, 2 * m)): b(t)
b('s_endpgm')
slow0.autonop(pro.ins); slow.autonop(epi.ins); sl.autonop(slow.ins); se.autonop(sl.ins)

errs = []
errs += check(pro.ins + pro2.ins + front.ins + p1.ins + loop.ins + loop.ins + epi.ins + slow.ins + sl.ins + sl.ins + se.ins, 'fast+slow')
errs += check(front.ins + p1.ins + loop.ins + epi2.ins + slow.ins, 'tail2')
errs += check(front.ins + p1.ins + loop.ins + epi1.ins + slow.ins, 'tail1')
errs += check(pro.ins + slow0.ins + slow.ins + sl.ins + sl.ins + se.ins, 'slow0')
for e in errs: print(e[2], file=sys.stderr)
assert not errs

hdr = open('cdna_kernels/' + NAME + '.s.ref').read().split('; Override launch')[0]
out = hdr + f'''; @launch grid=(256,1,1) block=(256,1,1) lds={LDS}
; Generated by my own scheduling script (hand-designed instruction streams).
; One workgroup = one head x 256 query rows; each wave owns 64 rows. K/V pages are gathered through
; the block table by LDS-DMA. Softmax shift = row max of the first processed key chunk; the final row sums
; are range-checked and the wave recomputes with the exact running max (L_slow) if the shift was unsafe.
.amdgcn_target "amdgcn-amd-amdhsa--gfx950"
.text
.globl {NAME}_kernel
.p2align 8
.type {NAME}_kernel,@function
{NAME}_kernel:
'''
for blk in (pro, pro2, front, loop, epi, epi2, epi1, slow0, slow, sl, se): out += blk.text()
out += 'L_codeend:\n'
out += f'''.section .rodata,"a"
.p2align 6
.amdhsa_kernel {NAME}_kernel
  .amdhsa_next_free_vgpr 512
  .amdhsa_next_free_sgpr 102
  .amdhsa_accum_offset 256
  .amdhsa_group_segment_fixed_size 0
  .amdhsa_kernarg_size 64
  .amdhsa_user_sgpr_count 2
  .amdhsa_user_sgpr_kernarg_segment_ptr 1
  .amdhsa_system_sgpr_workgroup_id_x 1
.end_amdhsa_kernel
'''
if opt['ts'] == 2: out += '; ' + 's_memrealtime ' * tsn[0] + '\n'
open(sys.argv[1], 'w').write(out)

import subprocess
r = subprocess.run(['clang', '-x', 'assembler', '-target', 'amdgcn-amd-amdhsa', '-mcpu=gfx950', '-c', sys.argv[1], '-o', '_chk.o'], capture_output=True, text=True)
assert r.returncode == 0, r.stderr
sym = {l.split()[-1]: int(l.split()[0], 16) for l in subprocess.run(['llvm-objdump', '-t', '_chk.o'], capture_output=True, text=True).stdout.splitlines() if ' .text' in l}
print({k: hex(v) for k, v in sorted(sym.items(), key=lambda x: x[1]) if k.startswith('L_')})
if opt['cpf']: assert sym['L_codeend'] - sym['L_pf'] >= 16384, 'code prefetch would run past the code'
```

```python
from asmlib import *

SCC_W = ('s_add_', 's_sub_', 's_cmp', 's_and_', 's_or_', 's_lshl', 's_lshr', 's_min', 's_max', 's_bfe', 's_xor', 's_addc', 's_addk')
SCC_R = ('s_cselect', 's_cbranch_scc', 's_addc')

class Op:
    def __init__(self, text, after=(), at=0, hi=None, vm=None, drain=False, space=0, prio=0, lo=None):
        self.ins = Ins(text); self.after = list(after); self.at = at; self.hi = hi; self.vm = vm; self.drain = drain
        self.space = space; self.prio = prio; self.lo = lo
        i = self.ins
        self.rd = set(i.rd); self.wr = set(i.wr)
        if any(i.op.startswith(p) for p in SCC_W): self.wr.add(('s', 'scc'))
        if any(i.op.startswith(p) for p in SCC_R): self.rd.add(('s', 'scc'))
        if i.op.startswith('s_addk'): self.rd |= set(i.wr)
        self.cls = i.cls
        o = i.op
        self.pk = o.startswith('v_pk_') and o != 'v_pk_mov_b32'
        if self.cls == 'valu':
            self.cost = 8 if (o in TRANS or o.startswith('v_permlane') or o.startswith('v_readlane')) else 4
        elif self.cls == 'ds': self.cost = 12 if o.startswith('ds_write') else 8
        elif self.cls == 'vmem': self.cost = 8
        elif o == 's_barrier': self.cost = 24
        elif o.startswith('s_cbranch'): self.cost = 12
        else: self.cost = 4

DS_LAT = 110

def step(prev, cur):
    if prev is None: return 0
    if prev.cls == 'mfma': return 8 if cur.cls in ('valu', 'vmem', 'mfma') else 4
    if prev.cls == 'valu': return prev.cost + (4 if cur.cls in ('ds', 'vmem') else 0)
    if prev.cls == 'ds': return prev.cost - 4 if cur.cls == 'ds' else prev.cost
    return prev.cost

def schedule(ops, ctx=(), vm_before=(), verbose=None):
    mf = [o for o in ops if o.cls == 'mfma']; nm = len(mf)
    midx = {id(o): k for k, o in enumerate(mf)}
    preds = {id(o): [] for o in ops}; succs = {id(o): [] for o in ops}
    lastw = {}; readers = {}; lastmem = {}
    inreg = {id(o) for o in ops}
    for o in ops:
        deps = {}
        def D(x, k):
            if id(x) in inreg and x is not o: deps.setdefault(id(x), [x, set()])[1].add(k)
        for r in o.rd:
            if r in lastw: D(lastw[r], 'raw')
        for r in o.wr:
            if r in lastw: D(lastw[r], 'waw')
            for x in readers.get(r, []): D(x, 'war')
        for x in o.after: D(x, 'ord')
        for x in (o.vm or []): D(x, 'ord')
        if o.cls == 'vmem':
            if 'vmem' in lastmem: D(lastmem['vmem'], 'ord')
            lastmem['vmem'] = o
        for a, kinds in deps.values():
            lat = 0
            if a.cls == 'ds' and (kinds & {'raw', 'waw'} or o.drain): lat = DS_LAT
            elif a.cls == 'mfma' and kinds & {'raw', 'waw'} and o.cls != 'mfma': lat = 36
            elif a.cls == 'valu' and 'raw' in kinds and any(r[0] == 's' for r in a.wr & o.rd): lat = 28
            if a.cls == 'vmem' and o.cls == 'vmem': lat = max(lat, o.space)
            preds[id(o)].append((a, lat)); succs[id(a)].append((o, lat))
        for r in o.rd: readers.setdefault(r, []).append(o)
        for r in o.wr: lastw[r] = o; readers[r] = []
    INF = 10 ** 7
    dl = {}
    for pos, o in reversed(list(enumerate(ops))):
        if o.cls == 'mfma': dl[id(o)] = midx[id(o)] * 16; continue
        d = INF + pos * 16 if o.hi is None else o.hi * 16
        for s, lat in succs[id(o)]: d = min(d, dl[id(s)] - lat - o.cost)
        dl[id(o)] = d - o.prio
    order = {id(o): i for i, o in enumerate(ops)}
    todo = sorted((o for o in ops if o.cls != 'mfma'), key=lambda o: (dl[id(o)], order[id(o)]))
    when = {}; seq = []; hist = list(ctx)
    prev = None; tprev = 0; tm = -16; mi = 0; nosalu = -100; lastcls = {}
    def nops(o):
        dist = 0; add = 0; k = 0
        for p in reversed(hist[-40:]):
            if p.states() == 0: continue
            n = need(p, o.ins)
            if relaxed(p, o.ins, n, k): n = 0
            if p.cls == 'mfma': k += 1
            add = max(add, n - dist); dist += p.states()
            if dist >= 20: break
        return add
    def earliest(o):
        if o.lo is not None and mi < o.lo: return None
        t = max(tprev + step(prev, o), o.at)
        for p, lat in preds[id(o)]:
            if id(p) not in when: return None
            t = max(t, when[id(p)] + lat)
        if o.cls == 'mfma': t = max(t, tm + 16)
        if o.pk: t = max(t, tm + 28)
        if o.cls == 'valu' or o.cls == 'vmem': t = max(t, tm + 8)
        if o.cls == 'salu': t = max(t, nosalu)
        if o.space and o.cls in lastcls: t = max(t, lastcls[o.cls] + o.space)
        t = max(t, tprev + step(prev, o) + 4 * nops(o))
        return t
    while todo or mi < nm:
        m = mf[mi] if mi < nm else None
        hard = m is not None and any(o.hi is not None and o.hi <= mi for o in todo)
        tmf = earliest(m) if (m is not None and not hard) else None
        cands = []
        for o in todo:
            t = earliest(o)
            if t is not None: cands.append((o, t))
        now = lambda o: tprev + step(prev, o)
        if tmf is not None: U = (m, tmf)
        else:
            assert cands, 'deadlock: ' + ', '.join(o.ins.text for o in todo[:5])
            U = cands[0]
        best = U
        if U[1] > now(U[0]):
            tol = 4 if nops(U[0]) else 0
            fit = [(o, t) for o, t in cands if o is not U[0] and t + step(o, U[0]) <= U[1] + tol]
            shadow = prev is not None and prev.cls in ('salu', 'smem') and tprev <= tm + 4
            nowait = [(o, t) for o, t in fit if t <= now(o)]
            if nowait:
                best = nowait[0]
                for o, t in fit:
                    if o is best[0]: break
                    if best[1] + step(best[0], o) > t + (4 if nops(o) else 0) and max(t, best[1] + step(best[0], o)) + step(o, U[0]) > U[1] + tol and dl[id(o)] + 64 < dl[id(best[0])] and t - now(o) <= 4:
                        best = (o, t); break
                if prev is not None and prev.cls == 'mfma' and best[0].cls == 'valu':
                    room = U[1] - (tprev + 8) - best[0].cost
                    for o, t in nowait:
                        if o.cls in ('salu', 'smem') and o.cost == 4: best = (o, t); break
                        if o.cls == 'ds' and room >= o.cost - 4: best = (o, t); break
            elif fit: best = min(fit, key=lambda x: x[1])
        k = nops(best[0])
        if k: hist.append(Ins(f's_nop {k - 1}'))
        o, t = best
        when[id(o)] = t; seq.append(o); hist.append(o.ins)
        if o.cls == 'mfma': tm = t; mi += 1
        else: todo.remove(o)
        if o.cls == 'valu' and any(r[0] == 's' for r in o.wr): nosalu = t + 32
        lastcls[o.cls] = t
        prev = o; tprev = t
    out = []; pend = []
    for o in seq:
        touched = o.rd | o.wr
        hit = [i for i, x in enumerate(pend) if x.wr & touched]
        if o.drain and pend: hit = [len(pend) - 1]
        if hit:
            k = max(hit)
            while k + 1 < len(pend) and when[id(pend[k + 1])] + DS_LAT + 16 <= when[id(o)]: k += 1
            j = len(out) - 1
            while j >= 0 and out[j].cls != 'mfma': j -= 1
            nds = sum(1 for x in out[j + 1:] if x.cls == 'ds')
            if j >= 0 and len(pend) - 1 - k >= nds and when[id(pend[k])] + DS_LAT - 16 <= when[id(out[j])]:
                w = Op(f's_waitcnt lgkmcnt({min(15, len(pend) - 1 - k - nds)})'); when[id(w)] = when[id(out[j])]; out.insert(j + 1, w)
            else:
                w = Op(f's_waitcnt lgkmcnt({min(15, len(pend) - 1 - k)})'); when[id(w)] = when[id(o)]; out.append(w)
            pend = pend[k + 1:]
        out.append(o)
        if o.cls == 'ds': pend.append(o)
    issued = list(vm_before)
    for o in out:
        if o.cls == 'vmem': issued.append(o)
        if o.vm is not None:
            last = max(issued.index(x) for x in o.vm)
            o.ins = Ins(f's_waitcnt vmcnt({len(issued) - 1 - last})')
    blk = Block(); blk.ins = [o.ins for o in out]
    blk.issued = issued; blk.pend = pend
    if verbose:
        print(f'sched {verbose}: {nm} mfma, {len(out)} instrs, est cycles {tprev}, last mfma at {tm}')
    blk.when = [(when[id(o)], o.ins.text) for o in out]
    return blk
```

```python
import sys, struct
from asmlib import *
from sched import *

NAME = 'standalone__paged_block_table_kv_pagedattention__prompt'
opt = dict(ts=0, fine=0, dspace=64, warm=1, owarm=0, tg1=1900, tg2=3000, tg4=4000, variant=-1, force_slow=0, cpf=1, sspace=0, dump=0, tq0=100, tq1=1100, tq2=2600, tq3=3600, tg0=900)
for a in sys.argv[2:]:
    k, v = a.split('='); opt[k] = int(v)

PS = 1056
US = 8 * PS
PR = 2 * US
KB = 0; VB = 3 * PR; QB = VB + 2 * PR
QW = 16384
LDS = 163840
f2u = lambda x: struct.unpack('<I', struct.pack('<f', x))[0]
CSCALE = f2u(1.4426950408889634 / 128 ** 0.5)
LMAX = f2u(2.0 ** 40)
def bf16(x):
    u = f2u(x); return (u + 0x7fff + ((u >> 16) & 1)) >> 16
_c = 1.4426950408889634 / 128 ** 0.5
CHI = bf16(_c); CLO = bf16(_c - struct.unpack('<f', struct.pack('<I', CHI << 16))[0])
CPAIR = (CLO << 16) | CHI

vO = lambda qb, db: 128 + qb * 32 + db * 4
vS = lambda e: 96 + e
vP = lambda buf, j: 64 + buf * 16 + j
vC = lambda qb: 48 + qb * 4
vL = lambda pr: 40 + pr * 4
vA = 36; vIdx = 35; vK = 34; vV = 33; vTab = 32; vOff = 28
vK0 = 27; vV0 = 26; vLane = 25; vOo = 24; vKey = 23; vVl = 22; vKh = 21; vVh = 20
vQoff = 16
vQr = 4
vM = 8
aQ = lambda qb, ks: qb * 16 + ks * 4
aKm = 64; aVm = 96; aX = lambda i: 96 + 32 * i
R = lambda k, b, n=4: f'{k}[{b}:{b + n - 1}]'
sQ = 20; sKV = 24; sO = 28; sBT = 32; sKs = 36; sVs = 40
sW = 44; sHead = 45; sCl = 47; sF = 48; sIt = 49; sRd = 50; sWb = 51; sU = 52; sPg = 53; sQw = 55; sRem = 54; sVar = 46
sScale = 56
sT = 58; sT2 = 59
sQo = 60
NREC = 132 * 131072
sTS = 64
sX = 98

tsn = [0]
def TS(b):
    if opt['ts']:
        b(f'{"s_memtime" if opt["ts"] == 2 else "s_memrealtime"} s[{sTS + 2 * tsn[0]}:{sTS + 2 * tsn[0] + 1}]'); tsn[0] += 1

def mf(d, a, bb, c): return f'v_mfma_f32_16x16x32_bf16 {d}, {a}, {bb}, {c}'
def qk(qb, kb, ks, c0, kreg=aKm, sreg=None):
    d = R('v', (vS(qb * 8) if sreg is None else sreg) + kb * 4)
    return mf(d, R('a', kreg + (kb * 4 + ks) * 4), R('a', aQ(qb, ks)), d if ks else c0)
def pv(qb, db, preg, vreg=aVm, zero=False):
    d = R('v', vO(qb, db))
    return mf(d, R('a', vreg + db * 4), R('v', preg), '0' if zero else d)
def smf(dst, preg): return f'v_smfmac_f32_16x16x64_bf16 {R("v", dst)}, {R("v", vA)}, {R("v", preg, 8)}, v{vIdx}'
def exr(r): return f'v_exp_f32 v{r}, v{r}'
def cvr(p, r): return f'v_cvt_pk_bf16_f32 v{p}, v{r}, v{r + 1}'
def ex(e): return exr(vS(e))
def cv(j, buf): return cvr(vP(buf, j), vS(2 * j))
def rdK(i, off, va=vK, kreg=aKm): return f'ds_read_b128 {R("a", kreg + i * 4)}, v{va} offset:{off + (i // 4) * 512 + (i % 4) * 64}'
def rdV(i, off, va=vV, vreg=aVm): return f'ds_read_b64_tr_b16 {R("a", vreg + i * 2, 2)}, v{va} offset:{off + (i % 2) * 512 + (i // 2) * 32}'
def dma(i, srd=sKV, so=sPg): return f'buffer_load_dwordx4 v{vOff + i}, {R("s", srd)}, s{so} offen offset:{i * PS} lds'

pro = Block(); b = pro
b(f"""
s_cmpk_ge_u32 s2, 256
s_cbranch_scc1 L_end
s_load_dwordx2 s[{sQ}:{sQ + 1}], s[0:1], 0
s_load_dwordx2 s[{sKs}:{sKs + 1}], s[0:1], 8
s_load_dwordx16 s[4:19], s[0:1], 0
""")
TS(b)
if opt['cpf']:
    b(f"""
s_cmp_ge_u32 s2, 8
s_cbranch_scc1 L_nopf
s_getpc_b64 s[{sX}:{sX + 1}]
L_pf:
v_lshlrev_b32 v1, 6, v0
global_load_dword a255, v1, s[{sX}:{sX + 1}]
L_nopf:
""")
b(f"""
v_readfirstlane_b32 s{sW}, v0
v_and_b32 v{vLane}, 63, v0
v_lshrrev_b32 v2, 4, v{vLane}
v_xor_b32 v3, v{vLane}, v2
v_lshlrev_b32 v{vQoff}, 4, v3
v_xor_b32 v{vQoff + 1}, 64, v{vQoff}
v_xor_b32 v{vQoff + 2}, 0x80, v{vQoff}
v_xor_b32 v{vQoff + 3}, 64, v{vQoff + 2}
s_and_b32 s{sHead}, s2, 7
s_lshl_b32 s{sHead}, s{sHead}, 5
s_lshr_b32 s{sT}, s2, 3
s_add_u32 s{sHead}, s{sHead}, s{sT}
s_lshl_b32 s{sQo}, s{sHead}, 16
s_lshl_b32 s{sQw}, s{sW}, 8
s_add_u32 s{sQo}, s{sQo}, s{sQw}
s_lshl_b32 s{sQw}, s{sW}, 6
s_add_u32 m0, s{sQw}, {QB}
s_lshr_b32 s{sT2}, s{sW}, 4
s_mov_b32 s{sQ + 2}, 16777216
s_mov_b32 s{sQ + 3}, 0x20000
s_bfe_u32 s{sU}, s{sW}, 0x10006
s_lshl1_add_u32 s{sT}, s{sT}, s{sU}
s_mul_i32 s{sT}, s{sT}, {NREC // 64}
s_mov_b32 s{sPg}, -1
s_cmp_lt_u32 s{sT2}, 8
s_waitcnt lgkmcnt(0)
s_load_dword s{sPg}, s[10:11], s{sT2}
s_cselect_b64 s[{sKV}:{sKV + 1}], s[6:7], s[8:9]
""")
if opt['warm']: b(f's_load_dword s{sU}, s[{sKV}:{sKV + 1}], s{sT}')
def qd(p, so): return f'buffer_load_dwordx4 v{vQoff + p}, {R("s", sQ)}, s{so} offen offset:{p * 1024} nt lds'
for p in range(4): b(qd(p, sQo))
b('L_e256:')
b(f"""
s_lshr_b32 s{sHead}, s{sHead}, 3
s_lshl_b32 s{sHead}, s{sHead}, 8
v_and_b32 v3, 15, v{vLane}
v_lshl_add_u32 v4, v2, 13, s{sHead}
v_lshl_add_u32 v{vOff}, v3, 4, v4
s_mul_i32 s{sWb}, s{sT2}, {PS}
s_add_u32 m0, s{sWb}, {KB + 2 * PR}
s_mov_b32 s{sKs + 2}, {NREC}
s_mov_b32 s{sKs + 3}, 0x20000
v_add_u32 v{vOff + 1}, {32768 - PS}, v{vOff}
v_add_u32 v{vOff + 2}, {2 * (32768 - PS)}, v{vOff}
v_add_u32 v{vOff + 3}, {3 * (32768 - PS)}, v{vOff}
v_bfe_u32 v1, v0, 6, 1
v_lshl_add_u32 v1, v{vLane}, 1, v1
v_lshlrev_b32 v1, 2, v1
global_load_dword v{vTab}, v1, s[10:11]
s_add_u32 s{sQw}, s{sQw}, {QB}
s_add_u32 s{sQo + 1}, s{sQo}, 4096
""")
if opt['warm']: b(f's_waitcnt lgkmcnt(1)\ns_cmp_lg_u32 s{sPg}, -1 ; sentinel\ns_cbranch_scc1 L_gotpg')
b(f's_waitcnt lgkmcnt(0)\nL_gotpg:\ns_lshl_b32 s{sPg}, s{sPg}, 17\ns_load_dword s{sCl}, s[12:13], 0')
if opt['owarm']: b(f's_load_dword s{sVar}, s[14:15], s{sQo}')
TS(b)
for i in range(4): b(dma(i, sKs))
b(f's_add_u32 m0, s{sQw}, {QW}')
for p in range(4): b(qd(p, sQo + 1))
b(f"""
s_lshr_b32 s{sW}, s{sW}, 6
s_add_u32 s{sQo + 2}, s{sQo}, 8192
s_add_u32 s{sQo + 3}, s{sQo}, 12288
s_mov_b32 s{sVs}, s8
s_mov_b32 s{sVs + 1}, s9
s_mov_b32 s{sVs + 2}, {NREC}
s_mov_b32 s{sVs + 3}, 0x20000
s_mov_b32 s{sKV + 2}, {NREC}
s_mov_b32 s{sKV + 3}, 0x20000
s_mov_b32 s{sO}, s14
s_mov_b32 s{sO + 1}, s15
s_mov_b32 s{sO + 2}, 16777216
s_mov_b32 s{sO + 3}, 0x20000
s_cmp_lt_u32 s{sW}, 2
s_cselect_b32 s{sT}, {KB}, {VB - US}
s_add_u32 s{sWb}, s{sWb}, s{sT}
v_and_b32 v4, 7, v3
v_lshrrev_b32 v5, 3, v3
v_mul_u32_u24 v6, {PS}, v4
v_lshl_add_u32 v6, v5, 8, v6
v_lshl_add_u32 v{vK0}, v2, 4, v6
v_and_b32 v7, 1, v2
v_lshrrev_b32 v8, 1, v2
v_lshlrev_b32 v6, 8, v3
v_lshl_add_u32 v6, v7, 5, v6
v_lshl_add_u32 v{vOo}, v8, 4, v6
v_lshl_add_u32 v{vKey}, v7, 4, v8
v_bfe_u32 v4, v{vLane}, 2, 3
v_mul_u32_u24 v6, {PS}, v4
v_lshl_add_u32 v6, v8, 8, v6
v_and_b32 v4, 3, v{vLane}
v_lshl_add_u32 v6, v4, 3, v6
v_add_u32 v{vV0}, {VB}, v6
v_lshrrev_b32 v5, 2, v3
v_mul_u32_u24 v6, {PS}, v5
v_lshl_add_u32 v6, v4, 8, v6
v_lshl_add_u32 v{vKh}, v2, 4, v6
v_mul_u32_u24 v6, {PS}, v2
v_lshl_add_u32 v6, v5, 8, v6
v_lshl_add_u32 v6, v4, 3, v6
v_add_u32 v{vVh}, {VB}, v6
v_bfe_u32 v4, v{vLane}, 1, 1
v_cmp_eq_u32 vcc, v4, v8
v_mov_b32 v5, 0x3f803f80
v_and_b32 v4, 1, v{vLane}
v_cndmask_b32 v{vA}, 0, v5, vcc
v_cndmask_b32 v{vA + 1}, 0, v5, vcc
v_cndmask_b32 v{vA + 2}, 0, v5, vcc
v_cndmask_b32 v{vA + 3}, 0, v5, vcc
v_mul_u32_u24 v4, 0xaaaa, v4
v_add_u32 v{vIdx}, 0x4444, v4
v_lshlrev_b32 v12, 2, v2
v_lshrrev_b32 v4, 2, v3
v_cmp_eq_u32 s[{sX}:{sX + 1}], v4, v2
v_and_b32 v4, 3, v3
v_mul_u32_u24 v14, 0x55, v4
v_accvgpr_write_b32 a241, 0
v_accvgpr_write_b32 a242, 0
v_xor_b32 v4, v2, v3
v_lshlrev_b32 v4, 4, v4
v_lshl_add_u32 v4, v3, 8, v4
v_add_u32 v{vQr}, s{sQw}, v4
v_xor_b32 v{vQr + 1}, 64, v{vQr}
v_xor_b32 v{vQr + 2}, 0x80, v{vQr}
v_xor_b32 v{vQr + 3}, 64, v{vQr + 2}
""")
for r in list(range(128, 256, 2)) + list(range(40, 48, 2)): b(f'v_mov_b64 v[{r}:{r + 1}], 0')
b(f"""
v_add_u32 v{vK}, {PR}, v{vK0}
v_add_u32 v{vV}, {PR}, v{vV0}
s_mov_b32 s{sRd}, {PR}
s_waitcnt lgkmcnt(0)
s_cmp_lt_u32 s{sW}, 2
s_cselect_b32 s{sU}, 2, 0
s_mov_b32 s{sScale}, {CSCALE:#x}
s_cmp_lt_i32 s{sCl}, 1
s_cselect_b32 s{sScale}, 0, s{sScale}
s_cselect_b32 s{sCl}, 2048, s{sCl}
s_min_u32 s{sCl}, s{sCl}, 2048
s_sub_u32 s{sF}, s{sCl}, 1
s_lshr_b32 s{sF}, s{sF}, 5
s_mov_b32 s{sScale + 1}, s{sScale}
s_cmp_lt_u32 s{sF}, 5
s_cbranch_scc1 L_slow0
""")
if opt['force_slow'] == 1: b('s_branch L_slow0')
pro.autonop()
pro2 = Block(); b = pro2
def zero_acc(b):
    for r in range(128, 256, 2): b(f'v_mov_b64 v[{r}:{r + 1}], 0')
vQi = 14; aCs = 240
b(f"""
s_cmp_eq_u32 s{sScale}, 0
s_cselect_b32 s{sT}, 0, {CPAIR:#x}
v_mov_b32 v1, s{sT}
v_cndmask_b32 v1, 0, v1, s[{sX}:{sX + 1}]
v_accvgpr_write_b32 a{aCs}, v1
v_accvgpr_write_b32 a{aCs + 3}, v1
""")
if opt['ts']: b('s_waitcnt lgkmcnt(0)')
pro2.autonop(pro.ins)

RQ = 224; TQ = 240; SA = 248
def qload(qb): return [f'ds_read_b128 {R("v", RQ + ks * 4)}, v{vQr + ks} offset:{qb * QW}' for ks in range(4)]
def qscale(qb, pk=True):
    L = []
    for i in range(16):
        t = TQ + (i % 4) * 2
        L += [f'v_lshlrev_b32 v{t}, 16, v{RQ + i}', f'v_and_b32 v{t + 1}, 0xffff0000, v{RQ + i}']
        if pk: L += [f'v_pk_mul_f32 v[{t}:{t + 1}], v[{t}:{t + 1}], s[{sScale}:{sScale + 1}]']
        else: L += [f'v_mul_f32 v{t}, s{sScale}, v{t}', f'v_mul_f32 v{t + 1}, s{sScale}, v{t + 1}']
        L += [f'v_cvt_pk_bf16_f32 v{t}, v{t}, v{t + 1}', f'v_accvgpr_write_b32 a{qb * 16 + i}, v{t}']
    return L
def rowmax(s, dst, t):
    return f'''v_max3_f32 v{dst}, v{s}, v{s + 1}, v{s + 2}
v_max3_f32 v{t}, v{s + 3}, v{s + 4}, v{s + 5}
v_max3_f32 v{dst}, v{dst}, v{s + 6}, v{s + 7}
v_max_f32 v{dst}, v{dst}, v{t}
v_mov_b32 v{t}, v{dst}
v_permlane32_swap_b32 v{dst}, v{t}
v_max_f32 v{dst}, v{dst}, v{t}
v_mov_b32 v{t}, v{dst}
v_permlane16_swap_b32 v{dst}, v{t}
v_max_f32 v{dst}, v{dst}, v{t}'''.split('\n')

ops = []
A = lambda t, **kw: (ops.append(Op(t, **kw)), ops[-1])[1]
pre_vm = [Op(qd(0, sQo)) for _ in range(13)]
Q = {0: pre_vm[0:5], 1: pre_vm[9:13]}; G = {0: pre_vm[5:9]}
def stamp(after):
    if opt['ts'] and opt['fine']:
        x = Block(); TS(x)
        o = A(x.ins[0].text, after=after, prio=10 ** 6); o.cls = 'salu'
        return [A('s_waitcnt lgkmcnt(0)', after=[o], prio=10 ** 6)]
    return after
HP = 100000
def issueQ(qb, after):
    A(f's_add_u32 m0, s{sQw}, {qb * QW}', after=after, prio=HP)
    Q[qb] = [A(qd(p, sQo + qb), after=after, prio=HP, space=opt['dspace']) for p in range(4)]
def issueG(n, after, prio=HP, hi=None):
    kw = dict(after=after, prio=prio, hi=hi)
    A(f's_add_u32 m0, s{sWb}, {(n - 1) * US}', **kw)
    A(f'v_readlane_b32 s{sPg}, v{vTab}, s{sU}', **kw)
    G[n] = [A(dma(i), space=opt['dspace'], **kw) for i in range(4)]
    A(f's_add_u32 s{sU}, s{sU}, 1', **kw)
def vmwait(lst, at, after=()): return A('s_waitcnt vmcnt(0)', vm=lst, at=at, after=after)
ldsreads = []
def prep(qb, after, pk):
    raw = aX(4)
    for ks in range(4): ldsreads.append(A(f'ds_read_b128 {R("a", raw + ks * 4)}, v{vQr + ks} offset:{qb * QW}', after=after))
    for ks in range(4):
        for h in range(2): A(f'v_smfmac_f32_16x16x32_bf16 {R("v", vO(qb, ks * 2 + h))}, {R("a", aCs + 2 * h, 2)}, {R("a", raw + ks * 4)}, v{vQi}')
    for i in range(16):
        d = vO(qb, 0) + 2 * i
        A(cvr(d, d)); A(f'v_accvgpr_write_b32 a{qb * 16 + i}, v{d}')
def QK(qb, c0, kreg, sreg=None, kmajor=False):
    seq = [(kb, ks) for ks in range(4) for kb in range(2)] if kmajor else [(kb, ks) for kb in range(2) for ks in range(4)]
    for kb, ks in seq: A(qk(qb, kb, ks, c0(kb), kreg, sreg))
def SM0(qb, s):
    d, t = (1, 2) if qb % 2 == 0 else (3, 13)
    for x in rowmax(s, d, t): A(x)
    for r in range(4): A(f'v_sub_f32 v{vC(qb) + r}, 0, v{d}')
    for j in range(4):
        for e in (2 * j, 2 * j + 1): A(f'v_sub_f32 v{s + e}, v{s + e}, v{d}'); A(exr(s + e))
        A(cvr(vP(0, qb * 4 + j), s + 2 * j))
def SM1(qb, buf=1, lim=32):
    for e in range(qb * 8, min(qb * 8 + 8, lim)):
        A(ex(e))
        if e % 2: A(cv(e // 2, buf))
cm = lambda kb: '0'
tq = [opt['tq0'], opt['tq1'], opt['tq2'], opt['tq3']]
cq = lambda q: (lambda kb: R('v', vC(q)))
def PV0(q):
    for db in range(8): A(pv(q, db, vP(0, q * 4), zero=True))
K0r, K1r, K2r, V1r = aKm, aX(1), aX(2), aX(3)
def QK0(q): QK(q, cm, K0r, vO(q, 0), kmajor=True); SM0(q, vO(q, 0))
def QK1(q): QK(q, cq(q), K1r); SM1(q)
def QK2(q): QK(q, cq(q), K2r)
def SM2(q): SM1(q, 0, 27)
def PV1(q):
    for db in range(8): A(pv(q, db, vP(1, q * 4), V1r))
w = vmwait(Q[0], tq[0]); w0 = stamp([w])
A(f'v_lshlrev_b32 v{vTab}, 17, v{vTab}', after=w0, prio=HP); issueG(1, w0); prep(0, w0, True)
for t in f"""s_lshl_b32 s{sT}, s{sF}, 5
s_sub_u32 s{sRem}, s{sCl}, s{sT}
s_sub_u32 s{sIt}, s{sF}, 3
s_lshr_b32 s{sIt}, s{sIt}, 1
s_and_b32 s{sVar}, s{sF}, 1
s_cmp_gt_u32 s{sRem}, 16
s_cselect_b32 s{sT}, 2, 0
s_or_b32 s{sVar}, s{sVar}, s{sT}
v_mov_b32 v15, 0xff800000""".split('\n'): A(t, after=w0)
for r in range(4):
    A(f'v_add_u32 v{vM + r}, {r}, v12', after=w0); A(f'v_cmp_le_u32 vcc, s{sRem}, v{vM + r}'); A(f'v_cndmask_b32 v{vM + r}, 0, v15, vcc')
w = vmwait(G[0], opt['tg0'], w0)
issueQ(2, [w])
b1 = stamp([A('s_barrier', after=[w], prio=2 * HP)])
for i in (0, 4, 1, 5, 2, 6, 3, 7): ldsreads.append(A(rdK(i, 2 * PR, vK0, K0r), after=b1))
for i in range(8): ldsreads.append(A(rdK(i, 2 * PR + US, vK0, K1r), after=b1))
QK0(0)
w = vmwait(Q[1], tq[1], b1); w1 = stamp([w])
issueG(2, w1); prep(1, w1, True)
QK1(0); QK0(1)
w = vmwait(G[1], opt['tg1'], w1); issueQ(3, [w])
b2 = stamp([A('s_barrier', after=[w])])
for i in range(16): ldsreads.append(A(rdV(i, 0, vV0), after=b2))
for i in range(8): ldsreads.append(A(rdK(i, 0, vK0, K2r), after=b2))
QK1(1); mark = [o for o in ops if o.cls == 'mfma'][-1]; PV0(0); QK2(0); PV0(1); A(smf(vL(0), vP(0, 0))); SM2(0)
w = vmwait(Q[2], tq[2], b2); w2 = stamp([w])
issueG(3, w2); prep(2, w2, True)
QK2(1); SM2(1); QK0(2)
w = vmwait(G[2], opt['tg2'], w2); issueG(4, [w])
b3 = stamp([A('s_barrier', after=[w, mark])])
for i in range(16): ldsreads.append(A(rdV(i, US, vV0, V1r), after=b3))
PV1(0); QK1(2); PV1(1); A(smf(vL(0), vP(1, 0)))
w = vmwait(Q[3], tq[3], b3); w3 = stamp([w])
n3 = len(ldsreads)
prep(3, w3, True)
b4 = w3
PV0(2); QK0(3)
for i in range(8): ldsreads.append(A(rdK(i, US, vK0, aKm), after=b3))
QK2(2); QK1(3); PV1(2); PV0(3); A(smf(vL(1), vP(0, 8))); SM2(2); QK2(3); SM2(3); PV1(3); A(smf(vL(1), vP(1, 8)))
nmf = sum(1 for o in ops if o.cls == 'mfma')
issueG(5, b4, prio=0, hi=nmf - 20); issueG(6, b4, prio=0, hi=nmf - 2)
A(f's_mov_b32 m0, s{sWb}')
w = vmwait(G[4], opt['tg4'], b4 + G[6])
A('s_barrier', after=[w] + ldsreads, drain=True)
front = schedule(ops, ctx=pro2.ins, vm_before=pre_vm, verbose='front')
if opt['dump'] == 1:
    for t, x in front.when: print(t, x)
if front.pend or opt['ts']: front('s_waitcnt lgkmcnt(0)')
TS(front)
front.autonop(pro2.ins)

def period(u, last=False):
    m = [qk(qb, kb, ks, R('v', vC(qb))) for qb in range(4) for kb in range(2) for ks in range(4)]
    m += [pv(qb, db, vP(u, qb * 4)) for qb in range(4) for db in range(8)]
    m += [smf(vL(0), vP(u, 0)), smf(vL(1), vP(u, 8))]
    sal = [[] for _ in m]; mem = [[] for _ in m]; val = [[] for _ in m]
    for k, e in enumerate(range(27, 32)): val[2 * k].append(ex(e))
    for e in range(27): val[10 + 2 * e].append(ex(e))
    for k, j in enumerate((13, 14, 15)): val[1 + 4 * k].append(cv(j, u))
    for j in range(13): val[13 + 4 * j].append(cv(j, 1 - u))
    i = 0
    for g in range(1, 22, 2):
        for _ in range(1 if g % 4 == 1 else 2):
            mem[g].append(rdV(i, u * US)); i += 1
    assert i == 16
    for i, g in enumerate((33, 35, 37, 41, 45, 49, 53, 57)): mem[g].append(rdK(i, u * US))
    sal[30].append('s_waitcnt lgkmcnt(0)')
    if not last:
        val[23].append(f'v_readlane_b32 s{sPg}, v{vTab}, s{sU}')
        sal[32].append(f's_cmp_le_u32 s{sU}, s{sF}')
        sal[34].append(f's_cselect_b32 s{sKV + 2}, s{sKs + 2}, 0')
        sal[36].append(f's_add_u32 s{sU}, s{sU}, 1')
        for i, g in enumerate((39, 43, 47, 51)): mem[g].append(dma(i))
    if u == 1 or last:
        sal[10].append(f's_add_u32 s{sT}, s{sRd}, {PR}')
        sal[12].append(f's_cmp_eq_u32 s{sT}, {3 * PR}')
        sal[14].append(f's_cselect_b32 s{sT}, 0, s{sT}')
    if last:
        val[27].append(f'v_add_u32 v{vK0}, s{sT}, v{vV0}')
        sal[63].append('s_waitcnt vmcnt(0) lgkmcnt(0)')
        sal[64].append('s_barrier')
    elif u == 0:
        sal[52].append(f's_add_u32 m0, m0, {US}')
        sal[64].append('s_waitcnt lgkmcnt(0)')
    else:
        sal[52].append(f's_add_u32 m0, s{sWb}, s{sRd}')
        val[27].append(f'v_add_u32 v{vV}, s{sT}, v{vV0}')
        val[59].append(f'v_add_u32 v{vK}, s{sT}, v{vK0}')
        sal[54].append(f's_mov_b32 s{sRd}, s{sT}')
        sal[56].append(f's_sub_u32 s{sIt}, s{sIt}, 1')
        sal[58].append(f's_cmp_lg_u32 s{sIt}, 0')
        sal[63].append('s_waitcnt vmcnt(8) lgkmcnt(0)')
        sal[64].append('s_barrier')
        sal[65].append('s_cbranch_scc1 L_loop')
    blk = Block()
    for g in range(len(m)):
        blk(m[g])
        for x in sal[g] + mem[g] + val[g]: blk(x)
    return blk
p0 = period(0); p1 = period(1)
loop = Block()('.p2align 6')('L_loop:').extend(p0)('L_mid:').extend(p1)

vR = lambda q: 2 + q
def norm_group(qb, m, pk, t):
    o = vO(qb, 2 * m); L = []
    sel = 'op_sel:[0,1] op_sel_hi:[1,1]' if qb % 2 else 'op_sel_hi:[1,0]'
    pr = vR(qb) & ~1
    if pk: L += [f'v_pk_mul_f32 v[{o + i}:{o + i + 1}], v[{o + i}:{o + i + 1}], v[{pr}:{pr + 1}] {sel}' for i in range(0, 8, 2)]
    else: L += [f'v_mul_f32 v{o + i}, v{o + i}, v{vR(qb)}' for i in range(8)]
    L += [f'v_cvt_pk_bf16_f32 v{t + i}, v{o + 2 * i}, v{o + 2 * i + 1}' for i in range(4)]
    L += [f'v_permlane16_swap_b32 v{t}, v{t + 2}', f'v_permlane16_swap_b32 v{t + 1}, v{t + 3}']
    L += [f'buffer_store_dwordx4 {R("v", t)}, v{vOo}, {R("s", sO)}, s{sQo + qb} offen offset:{m * 64} sc1']
    return L
vT = 16
sS = lambda q: 96 + (q % 2) * 16
pP = lambda q: 80 + (q % 2) * 8
def make_tail(T, half, name):
    global ops
    ops = []
    pre_vm = [Op(dma(0)) for _ in range(8)]
    blk = Block()
    if not half:
        blk(f'v_mov_b32 v2, 0xff800000')
        for kb in range(2):
            for r in range(4):
                blk(f'v_add_u32 v1, {4 * r + 2 * kb}, v{vKey}\nv_cmp_le_u32 vcc, s{sRem}, v1\nv_cndmask_b32 v{vM + kb * 4 + r}, 0, v2, vcc')
    for e in range(27, 32): A(ex(e))
    for j in range(13, 16): A(cv(j, 0))
    if T == 2:
        A(f's_add_u32 s{sT}, s{sRd}, {PR}'); A(f's_cmp_eq_u32 s{sT}, {3 * PR}'); A(f's_cselect_b32 s{sT}, 0, s{sT}')
        A(f'v_add_u32 v{vVl}, s{sT}, v{vVh if half else vV0}')
        if half:
            A(f'v_add_u32 v{vKh}, s{sRd}, v{vKh}')
            for i in range(4): A(rdK(i, 0, vKh, aX(1)))
        else:
            for i in range(8): A(rdK(i, 0, vK, aX(1)))
    for i in range(16): A(rdV(i, 0))
    for i in range(16): A(rdV(i, US, vV, aX(2)))
    if T == 2:
        w = A('s_waitcnt vmcnt(0)', vm=pre_vm[:4], at=300)
        bb = [A('s_barrier', after=[w], hi=opt.get('tbar', 30))]
        for i in range(0, 16, 2 if half else 1): A(rdV(i, 0, vVl, aX(3)), after=bb)
    nz = 4 if T == 1 else (2 if half else 0)
    for q in range(2):
        for r in range(8 - nz, 8, 2): A(f'v_mov_b64 v[{pP(q) + r}:{pP(q) + r + 1}], 0')
    def masked(q, kreg, s0):
        for kb in range(1 if half else 2):
            for r in range(4): A(f'v_add_f32 v{s0 + kb * 4 + r}, v{vC(q)}, v{vM + kb * 4 + r}')
            for ks in range(4): A(qk(q, kb, ks, R('v', s0 + kb * 4), kreg, s0))
    def tQK(q):
        if T == 2: QK(q, cq(q), aKm, sS(q)); masked(q, aX(1), sS(q) + 8)
        else: masked(q, aKm, sS(q))
        for j in range(8 - nz): A(exr(sS(q) + 2 * j)); A(exr(sS(q) + 2 * j + 1)); A(cvr(pP(q) + j, sS(q) + 2 * j))
    def tPV0(q):
        for db in range(8): A(pv(q, db, vP(0, q * 4)))
    def tPV12(q):
        A(f'v_mov_b64 v[{vT}:{vT + 1}], v[{vL(0) + 2 * q}:{vL(0) + 2 * q + 1}]'); A(f'v_mov_b64 v[{vT + 2}:{vT + 3}], 0')
        k = 4 if T == 2 else 0
        for db in range(k): A(pv(q, db, pP(q), aX(2)))
        A(smf(vT, pP(q)))
        for db in range(k, 8): m = A(pv(q, db, pP(q), aX(2)))
        if T == 2:
            for db in range(8):
                if half:
                    d = R('v', vO(q, db))
                    m = A(f'v_mfma_f32_16x16x16_bf16 {d}, {R("a", aX(3) + db * 4, 2)}, {R("v", pP(q) + 4, 2)}, {d}')
                else: m = A(pv(q, db, pP(q) + 4, aX(3)))
        A(f'v_add_f32 v1, v{vT}, v{vT + 1}'); A(f'v_add_f32 v6, v{vT + 2}, v{vT + 3}'); A(f'v_add_f32 v1, v1, v6')
        A(f'v_rcp_f32 v{vR(q)}, v1')
        A(f'v_add_f32 v7, v7, v1' if q else 'v_mov_b32 v7, v1')
        return m
    def tnorm(q, his, lastm=None):
        for m in range(4):
            pk = his[m] is None
            for t in norm_group(q, m, pk, vO(q, 2 * m)): A(t, after=[lastm] if pk else [], hi=his[m], space=opt['sspace'] if t.startswith('buffer') else 0)
    cnt = lambda: sum(1 for o in ops if o.cls == 'mfma')
    tQK(0); A(smf(vL(0), vP(0, 0))); tPV0(0); tQK(1); A(smf(vL(1), vP(0, 8)))
    tPV12(0); n0 = cnt(); o0 = ops; ops = []
    tPV0(1); tQK(2); tPV12(1); per = cnt(); o1 = ops; ops = o0
    st = [per * (i + 1) // 4 - 2 for i in range(4)]
    tnorm(0, [n0 + x for x in st]); ops += o1
    n = cnt(); tnorm(1, [n + x for x in st])
    tPV0(2); tQK(3); tPV12(2); n = cnt(); tPV0(3); lastm = tPV12(3); rest = cnt() - n
    tnorm(2, [n + x if x < rest else None for x in st], lastm); tnorm(3, [None] * 4, lastm)
    tl = schedule(ops, ctx=loop.ins + blk.ins, vm_before=pre_vm, verbose=name)
    if opt['dump'] == 2 and half:
        for t, x in tl.when: print(t, x)
    if opt['ts'] and half:
        k = max(i for i, x in enumerate(tl.ins) if x.cls == 'mfma')
        x = Block(); TS(x); tl.ins.insert(k + 1, x.ins[0])
    blk.extend(tl)
    blk(f'v_cmp_nge_f32 vcc, {LMAX:#x}, v7\ns_cbranch_vccnz L_slow')
    if opt['force_slow'] == 2: blk('s_branch L_slow')
    return blk
epi = Block()
TS(epi)
if opt['ts']: epi('s_waitcnt lgkmcnt(0)')
epi(f's_cmp_lg_u32 s{sVar}, 0\ns_cbranch_scc1 L_tail2')
epi.extend(make_tail(2, True, 'tail half'))
b = epi
if opt['ts']:
    TS(b)
    b('s_waitcnt vmcnt(0)')
    TS(b)
    n = tsn[0]
    b(f's_waitcnt lgkmcnt(0)\ns_mov_b32 s{sQ}, s18\ns_mov_b32 s{sQ + 1}, s19\ns_lshl_b32 s{sT}, s2, 2\ns_add_u32 s{sT}, s{sT}, s{sW}\ns_lshl_b32 s{sT}, s{sT}, 6\nv_mov_b32 v2, 0')
    for i in range(n):
        b(f'v_mov_b32 v1, s{sTS + 2 * i}\nbuffer_store_dword v1, v2, {R("s", sQ)}, s{sT} offen offset:{4 * i}')
b('L_end:\ns_endpgm')
epi.autonop(loop.ins)
epi2 = Block()(f'L_tail2:\ns_cmp_lg_u32 s{sVar}, 2\ns_cbranch_scc1 L_tail1').extend(make_tail(2, False, 'tail full'))('s_endpgm').autonop(loop.ins)
epi1 = Block()('L_tail1:').extend(make_tail(1, False, 'tail odd'))('s_endpgm').autonop(loop.ins)

slow0 = Block(); b = slow0
b('L_slow0:')
for qb in (2, 3):
    b(f's_add_u32 m0, s{sQw}, {qb * QW}')
    for p in range(4): b(qd(p, sQo + qb))
b('s_waitcnt vmcnt(0)')
for qb in range(4):
    for t in qload(qb): b(t)
    b('s_waitcnt lgkmcnt(0)')
    for t in qscale(qb): b(t)
b(f's_mov_b32 s{sWb}, {VB}\ns_branch L_slow1')
slow = Block(); b = slow
b(f'L_slow:\ns_mov_b32 s{sWb}, {VB + 3 * PR}\nL_slow1:')
vMx = 8; vLs = 12
b(f'''
s_waitcnt vmcnt(0)
s_mul_i32 s{sT}, s{sW}, {US}
s_add_u32 s{sWb}, s{sWb}, s{sT}
v_add_u32 v{vK}, s{sWb}, v{vK0}
s_sub_u32 s{sT}, s{sWb}, {VB}
v_add_u32 v{vV}, s{sT}, v{vV0}
s_mov_b32 s{sU}, 0
''')
zero_acc(b)
for qb in range(4): b(f'v_mov_b32 v{vMx + qb}, 0xff800000\nv_mov_b32 v{vLs + qb}, 0')
sl = Block(); b = sl
b('L_sloop:')
b(f'''
s_lshl_b32 s{sT}, s{sU}, 3
s_load_dwordx2 s[{sX}:{sX + 1}], s[10:11], s{sT}
s_waitcnt lgkmcnt(0)
s_lshl_b32 s{sX}, s{sX}, 17
s_lshl_b32 s{sX + 1}, s{sX + 1}, 17
''')
def sdma(b, srd):
    b(f's_mov_b32 m0, s{sWb}')
    for i in range(4): b(dma(i, srd, sX))
    b(f's_add_u32 m0, s{sWb}, {4 * PS}')
    for i in range(4): b(dma(i, srd, sX + 1))
sdma(b, sKs)
b('s_waitcnt vmcnt(0)')
for i in range(8): b(rdK(i, 0))
b('s_waitcnt lgkmcnt(0)')
sdma(b, sVs)
for qb in range(4):
    for kb in range(2):
        for ks in range(4): b(qk(qb, kb, ks, '0'))
b(f's_lshl_b32 s{sT}, s{sU}, 5\ns_sub_u32 s{sT}, s{sCl}, s{sT}\nv_mov_b32 v5, 0xff800000')
for kb in range(2):
    for r in range(4):
        b(f'v_add_u32 v4, {4 * r + 2 * kb}, v{vKey}\nv_cmp_le_u32 vcc, s{sT}, v4')
        for qb in range(4):
            s = vS(qb * 8 + kb * 4 + r)
            b(f'v_cndmask_b32 v{s}, v{s}, v5, vcc')
for qb in range(4):
    for t in rowmax(vS(qb * 8), 1, 2): b(t)
    b(f'''
v_max_f32 v1, v1, v{vMx + qb}
v_sub_f32 v2, v{vMx + qb}, v1
v_exp_f32 v2, v2
v_mov_b32 v{vMx + qb}, v1
''')
    for e in range(8): b(f'v_sub_f32 v{vS(qb * 8 + e)}, v{vS(qb * 8 + e)}, v1')
    for e in range(8): b(ex(qb * 8 + e))
    b(f'v_mul_f32 v{vLs + qb}, v{vLs + qb}, v2')
    for i in range(32): b(f'v_mul_f32 v{vO(qb, 0) + i}, v{vO(qb, 0) + i}, v2')
    for j in range(4): b(cv(qb * 4 + j, 0))
    for j in range(4):
        b(f'''
v_lshlrev_b32 v3, 16, v{vP(0, qb * 4 + j)}
v_and_b32 v4, 0xffff0000, v{vP(0, qb * 4 + j)}
v_add_f32 v{vLs + qb}, v{vLs + qb}, v3
v_add_f32 v{vLs + qb}, v{vLs + qb}, v4
''')
b('s_waitcnt vmcnt(0)')
for i in range(8): b(rdV(i, 0))
b('s_waitcnt lgkmcnt(0)')
for i in range(8, 16): b(rdV(i, 0))
b('s_waitcnt lgkmcnt(0)')
for qb in range(4):
    for db in range(8): b(pv(qb, db, vP(0, qb * 4)))
b(f'''
s_nop 7
s_add_u32 s{sU}, s{sU}, 1
s_cmp_le_u32 s{sU}, s{sF}
s_cbranch_scc1 L_sloop
''')
se = Block(); b = se
for qb in range(4):
    b(f'''
v_mov_b32 v5, v{vLs + qb}
v_permlane32_swap_b32 v5, v{vLs + qb}
v_add_f32 v{vLs + qb}, v{vLs + qb}, v5
v_mov_b32 v5, v{vLs + qb}
v_permlane16_swap_b32 v5, v{vLs + qb}
v_add_f32 v{vLs + qb}, v{vLs + qb}, v5
''')
for qb in range(4): b(f'v_rcp_f32 v{vR(qb)}, v{vLs + qb}')
for qb in range(4):
    for m in range(4):
        for t in norm_group(qb, m, True, vO(qb, 2 * m)): b(t)
b('s_endpgm')
slow0.autonop(pro.ins); slow.autonop(epi.ins); sl.autonop(slow.ins); se.autonop(sl.ins)

errs = []
errs += check(pro.ins + pro2.ins + front.ins + loop.ins + loop.ins + epi.ins + slow.ins + sl.ins + sl.ins + se.ins, 'fast+slow')
errs += check(front.ins + loop.ins + epi2.ins + slow.ins, 'tail2')
errs += check(front.ins + loop.ins + epi1.ins + slow.ins, 'tail1')
errs += check(pro.ins + slow0.ins + slow.ins + sl.ins + sl.ins + se.ins, 'slow0')
for e in errs: print(e[2], file=sys.stderr)
assert not errs

hdr = open('cdna_kernels/' + NAME + '.s.ref').read().split('; Override launch')[0]
out = hdr + f'''; @launch grid=(256,1,1) block=(256,1,1) lds={LDS}
; Generated by my own scheduling script (hand-designed instruction streams).
; One workgroup = one head x 256 query rows; each wave owns 64 rows. K/V pages are gathered through
; the block table by LDS-DMA. Softmax shift = row max of the first processed key chunk; the final row sums
; are range-checked and the wave recomputes with the exact running max (L_slow) if the shift was unsafe.
.amdgcn_target "amdgcn-amd-amdhsa--gfx950"
.text
.globl {NAME}_kernel
.p2align 8
.type {NAME}_kernel,@function
{NAME}_kernel:
'''
for blk in (pro, pro2, front, loop, epi, epi2, epi1, slow0, slow, sl, se): out += blk.text()
out += 'L_codeend:\n'
out += f'''.section .rodata,"a"
.p2align 6
.amdhsa_kernel {NAME}_kernel
  .amdhsa_next_free_vgpr 512
  .amdhsa_next_free_sgpr 102
  .amdhsa_accum_offset 256
  .amdhsa_group_segment_fixed_size 0
  .amdhsa_kernarg_size 64
  .amdhsa_user_sgpr_count 2
  .amdhsa_user_sgpr_kernarg_segment_ptr 1
  .amdhsa_system_sgpr_workgroup_id_x 1
.end_amdhsa_kernel
'''
if opt['ts'] == 2: out += '; ' + 's_memrealtime ' * tsn[0] + '\n'
open(sys.argv[1], 'w').write(out)

import subprocess
r = subprocess.run(['clang', '-x', 'assembler', '-target', 'amdgcn-amd-amdhsa', '-mcpu=gfx950', '-c', sys.argv[1], '-o', '_chk.o'], capture_output=True, text=True)
assert r.returncode == 0, r.stderr
sym = {l.split()[-1]: int(l.split()[0], 16) for l in subprocess.run(['llvm-objdump', '-t', '_chk.o'], capture_output=True, text=True).stdout.splitlines() if ' .text' in l}
print({k: hex(v) for k, v in sorted(sym.items(), key=lambda x: x[1]) if k.startswith('L_')})
if opt['cpf']: assert sym['L_codeend'] - sym['L_pf'] >= 16384, 'code prefetch would run past the code'
```
